```python
import torch

def _softmax(x, axis=-1):
    return torch.softmax(x, dim=axis)
def _gelu(x):
    return torch.nn.functional.gelu(x, approximate="tanh")
def _silu(x):
    return torch.nn.functional.silu(x)
def _sigmoid(x):
    return torch.sigmoid(x)
def _layernorm(x, axis=-1, eps=1e-5):
    m = x.mean(dim=axis, keepdim=True)
    v = x.var(dim=axis, keepdim=True, unbiased=False)
    return (x - m) / torch.sqrt(v + eps)
def _scatter_add(tgt, idx, src, axis=0):
    return tgt.clone().index_add_(axis, idx, src)
def _segment_sum(src, seg, n):
    out = torch.zeros((n,) + src.shape[1:], dtype=src.dtype)
    return out.index_add_(0, seg, src)
def _pad(x, pw):
    flat = tuple(v for pair in reversed(pw) for v in pair)
    return torch.nn.functional.pad(x, flat)

kernel_name = 'parallel_sum__sliding_block__geglu_ffn__prompt'

def setup_inputs():

    _w = (lambda a: (lambda t: t.to(torch.bfloat16) if t.is_floating_point() else t)(torch.as_tensor(a)))
    def _A_setup():
        B, S, D = 1, 2048, 640
        return {
            "x": _w((lambda *s: torch.randn(*s, dtype=torch.bfloat16) * 0.05)(B, S, D)),
            "wqkv": _w((lambda *s: torch.randn(*s, dtype=torch.bfloat16) * 0.05)(D, 3 * D)),
            "wo": _w((lambda *s: torch.randn(*s, dtype=torch.bfloat16) * 0.05)(D, D)),
        }
    _A_in = _A_setup()

    def _B_setup():
        B, S, D, F = 1, 2048, 640, 1728
        return {
            "x": _w((lambda *s: torch.randn(*s, dtype=torch.bfloat16) * 0.05)(B, S, D)),
            "w_gate": _w((lambda *s: torch.randn(*s, dtype=torch.bfloat16) * 0.05)(D, F)),
            "w_up": _w((lambda *s: torch.randn(*s, dtype=torch.bfloat16) * 0.05)(D, F)),
            "w_down": _w((lambda *s: torch.randn(*s, dtype=torch.bfloat16) * 0.05)(F, D)),
        }
    _B_in = _B_setup()

    return {
        "A_x": _A_in["x"],
        "A_wqkv": _A_in["wqkv"],
        "A_wo": _A_in["wo"],
        "B_x": _B_in["x"],
        "B_w_gate": _B_in["w_gate"],
        "B_w_up": _B_in["w_up"],
        "B_w_down": _B_in["w_down"],
    }

def reference(A_x, A_wqkv, A_wo, B_x, B_w_gate, B_w_up, B_w_down):
    def _A_ref(x, wqkv, wo):
        B, S, D = x.shape
        H = 32; Dh = D // H; W = 256
        qkv = (lambda x, *d: x.permute(*d))((x @ wqkv).reshape(B, S, 3, H, Dh), 2, 0, 3, 1, 4)
        q, k, v = qkv[0], qkv[1], qkv[2]
        scores = torch.einsum("bhqd,bhkd->bhqk", q, k) * (Dh ** -0.5)
        idx = torch.arange(S)
        mask = (idx[:, None] - idx[None, :] >= 0) & (idx[:, None] - idx[None, :] < W)
        scores = torch.where(mask[None, None], scores, -1e9)
        p = _softmax(scores, axis=-1)
        o = torch.einsum("bhqk,bhkd->bhqd", p, v)
        return (lambda x, *d: x.permute(*d))(o, 0, 2, 1, 3).reshape(B, S, D) @ wo

    def _B_ref(x, w_gate, w_up, w_down):
        return (_gelu(x @ w_gate) * (x @ w_up)) @ w_down

    x = A_x
    xn = _layernorm(x, axis=-1)
    return x + _A_ref(xn, A_wqkv, A_wo) + _B_ref(xn, B_w_gate, B_w_up, B_w_down)
```

```python
class Asm:
    def __init__(s): s.L=[]
    def __call__(s, t):
        for l in t.strip('\n').split('\n'): s.L.append('  '+l.strip() if not l.strip().endswith(':') else l.strip())
    def txt(s): return '\n'.join(s.L)+'\n'
def vr(a,n): return f"v[{a}:{a+n-1}]" if n>1 else f"v{a}"
def sr(a,n): return f"s[{a}:{a+n-1}]" if n>1 else f"s{a}"
def srd(A, d, base, nbytes, off=0):
    if off:
        A(f"s_add_u32 s{d}, s{base}, {off}\ns_addc_u32 s{d+1}, s{base+1}, 0")
    else:
        A(f"s_mov_b32 s{d}, s{base}\ns_mov_b32 s{d+1}, s{base+1}")
    A(f"s_mov_b32 s{d+2}, {nbytes}\ns_mov_b32 s{d+3}, 0x20000")
def interleave(main, fill):
    out=[]; n=len(main); m=len(fill); k=0
    for i,x in enumerate(main):
        out.append(x)
        tgt=(m*(i+1)+n-1)//n
        while k<tgt: out.append(fill[k]); k+=1
    return out
def stamp(A, idx, dbg, tmp=96):
    pass
QKV_PLANE=98304; HO_OFF=0x900000; HO_PITCH=4736; HO_BYTES=2048*4736
def desc(name, vg, sg=96):
    return f""".p2align 6
.amdhsa_kernel {name}
  .amdhsa_next_free_vgpr {vg}
  .amdhsa_next_free_sgpr {sg}
  .amdhsa_accum_offset {(vg+3)//4*4}
  .amdhsa_group_segment_fixed_size 0
  .amdhsa_kernarg_size 80
  .amdhsa_user_sgpr_count 2
  .amdhsa_user_sgpr_kernarg_segment_ptr 1
  .amdhsa_system_sgpr_workgroup_id_x 1
.end_amdhsa_kernel
"""
def head(A,name):
    A(f".globl {name}\n.p2align 8\n.type {name},@function\n{name}:")
```

```python
from common import *
import math
NS=5; XW=NS*2048; WB=8*XW; WS=12544; CSB=WB+NS*WS; K1_LDS=CSB+768
ACC=0; FA=96; FB=124; CSR=152; VSUM=158; VSQ=159; VCS=160
VX0=163; VX1=164; VW=165; VXR0=166; VXR1=167; VWR=168; VCR=169; T=170
K1_VG=208
def variant(A, NT, gu):
    P='G' if gu else 'Q'
    pitch=3456 if gu else 3840
    RD=NT*1024+128
    A(f"""
    s_mul_i32 s24, s20, {XW}
    s_mul_i32 s25, s20, {NT*128}
    s_add_u32 s25, s25, {WB}
    v_lshrrev_b32 v{T}, 3, v207
    v_bfe_u32 v{T+1}, v207, 1, 2
    v_and_b32 v{T+2}, 1, v207
    s_lshl_b32 s26, s20, 2
    v_add_u32 v{T+1}, s26, v{T+1}
    v_mul_u32_u24 v{T+1}, {pitch}, v{T+1}
    v_lshlrev_b32 v{T}, 5, v{T}
    v_lshl_add_u32 v{T}, v{T+2}, 4, v{T}
    s_lshl_b32 s26, s22, 1
    v_add3_u32 v{VW}, v{T}, v{T+1}, s26
    v_lshrrev_b32 v{T}, 5, v207
    v_bfe_u32 v{T+1}, v207, 4, 1
    v_and_b32 v{T+2}, 1, v207
    v_bfe_u32 v{T+3}, v207, 2, 2
    v_bfe_u32 v{T+4}, v207, 1, 1
    v_mul_u32_u24 v{T+5}, {RD}, v{T+1 if gu else T+2}
    v_lshl_add_u32 v{T+5}, v{T+2 if gu else T+1}, 4, v{T+5}
    v_lshl_add_u32 v{T+5}, v{T+3}, 5, v{T+5}
    v_lshl_add_u32 v{T+5}, v{T+4}, 3, v{T+5}
    v_mul_u32_u24 v{T+6}, {2*NT*128}, v{T}
    v_add_u32 v{VWR}, {WB}, v{T+5}
    v_add_u32 v{VWR}, v{T+6}, v{VWR}
    v_lshl_add_u32 v{VCR}, v{T}, 7, v{T+5}
    v_add_u32 v{VCR}, s25, v{VCR}
    """)
    ehi = 0xffff if gu else 0xff
    def dma(sl):
        return [f"s_add_u32 m0, s24, {sl*2048}\ns_nop 0\nbuffer_load_dwordx4 v{VX0}, s[8:11], s30 offen lds",
                f"s_add_u32 m0, s24, {sl*2048+1024}\ns_nop 0\nbuffer_load_dwordx4 v{VX1}, s[8:11], s30 offen lds\ns_add_u32 s30, s30, 64",
                f"s_add_u32 m0, s25, {sl*WS}\ns_mov_b32 exec_hi, {ehi}\nbuffer_load_dwordx4 v{VW}, s[12:15], s31 offen lds\ns_mov_b32 exec_hi, -1",
                f"s_add_u32 m0, s25, {sl*WS+RD}\ns_mov_b32 exec_hi, {ehi}\nbuffer_load_dwordx4 v{VW}, s[16:19], s31 offen lds\ns_mov_b32 exec_hi, -1\ns_add_u32 s31, s31, {32*pitch}"]
    A("s_mov_b32 s30, 0\ns_mov_b32 s31, 0")
    for sl in range(NS-1):
        for d in dma(sl): A(d)
    for r in list(range(ACC,ACC+NT*16))+list(range(FB,FB+28))+list(range(CSR,VCS+3)): A(f"v_mov_b32 v{r}, 0")
    A(f"""v_lshlrev_b32 v{T}, 2, v207
    s_mul_i32 s26, s20, 256
    v_add_u32 v{T}, s26, v{T}
    s_cmp_lt_u32 s20, 3
    s_cbranch_scc0 L{P}_nz
    ds_write_b32 v{T}, v{VSUM} offset:0
    L{P}_nz:""".replace("offset:0",f"offset:0").replace(f"ds_write_b32 v{T}", f"v_add_u32 v{T}, {CSB}, v{T}\nds_write_b32 v{T}"))
    A("s_mov_b32 s28, 0\ns_mov_b32 s29, 0x3f803f80")
    def reads(F, sl, ks):
        L=[f"ds_read_b128 {vr(F,4)}, v{VXR1 if ks else VXR0} offset:{sl*2048}"]
        for t in range(NT):
            for e in range(2):
                L.append(f"ds_read_b64_tr_b16 {vr(F+4+4*t+2*e,2)}, v{VWR} offset:{sl*WS+((4*ks+e)*NT+t)*128}")
        return L
    def mf(F): return [f"v_mfma_f32_32x32x16_bf16 {vr(ACC+16*t,16)}, {vr(F+4+4*t,4)}, {vr(F,4)}, {vr(ACC+16*t,16)}" for t in range(NT)]
    def st(F):
        L=[]
        for i in range(4): L+= [f"v_dot2c_f32_bf16 v{VSUM}, s29, v{F+i}", f"v_dot2c_f32_bf16 v{VSQ}, v{F+i}, v{F+i}"]
        return L
    def csd(): return [f"v_dot2c_f32_bf16 v{VCS+j}, s29, v{CSR+2*j+e}" for e in range(2) for j in range(3)]
    def mix(a,b):
        o=[];
        while a or b:
            if a:o.append(a.pop(0))
            if a:o.append(a.pop(0))
            if b:o.append(b.pop(0))
        return o
    A(f"L{P}_loop:")
    for sl in range(NS):
        A("s_waitcnt vmcnt(12) lgkmcnt(0)\ns_barrier")
        d=dma((sl+NS-1)%NS)
        fill=mix(reads(FA,sl,0), st(FB)+csd()[:0])
        fill=fill[:6]+[d[0]]+fill[6:12]+[d[1]]+fill[12:]+csd()
        for x in interleave(mf(FB),fill): A(x)
        A("s_waitcnt lgkmcnt(0)")
        csr=[f"ds_read_b64_tr_b16 {vr(CSR+2*j,2)}, v{VCR} offset:{sl*WS+2*j*128}" for j in range(3)]
        fill=mix(reads(FB,sl,1)+csr, st(FA))
        fill=fill[:6]+[d[2]]+fill[6:14]+[d[3]]+fill[14:]
        for x in interleave(mf(FA),fill): A(x)
        if sl==0:
            A("s_cmp_eq_u32 s28, 3\ns_cselect_b32 s10, 0, s10\ns_cselect_b32 s14, 0, s14\ns_cselect_b32 s18, 0, s18")
    A(f"s_add_u32 s28, s28, 1\ns_cmp_lt_u32 s28, 4\ns_cbranch_scc1 L{P}_loop")
    A("s_waitcnt lgkmcnt(0)")
    for x in interleave(mf(FB), st(FB)+csd()): A(x)
    A(f"""s_nop 3
    v_and_b32 v{T}, 31, v207
    v_lshrrev_b32 v{T+1}, 5, v207
    v_lshlrev_b32 v{T+2}, 2, v207
    v_add_u32 v{T+2}, {CSB}, v{T+2}
    ds_add_f32 v{T+2}, v{VCS} offset:0
    ds_add_f32 v{T+2}, v{VCS+1} offset:256
    ds_add_f32 v{T+2}, v{VCS+2} offset:512
    v_mov_b32 v{T+3}, v{VSUM}
    v_mov_b32 v{T+4}, v{VSQ}
    s_nop 1
    v_permlane32_swap_b32 v{VSUM}, v{T+3}
    v_permlane32_swap_b32 v{VSQ}, v{T+4}
    s_nop 1
    v_add_f32 v{VSUM}, v{VSUM}, v{T+3}
    v_add_f32 v{VSQ}, v{VSQ}, v{T+4}
    v_mul_f32 v{VSUM}, {hx(1/640)}, v{VSUM}
    v_mul_f32 v{VSQ}, {hx(1/640)}, v{VSQ}
    v_fma_f32 v{VSQ}, -v{VSUM}, v{VSUM}, v{VSQ}
    v_max_f32 v{VSQ}, 0, v{VSQ}
    v_add_f32 v{VSQ}, {hx(1e-5)}, v{VSQ}
    v_rsq_f32 v{VSQ}, v{VSQ}
    v_lshlrev_b32 v{T+2}, 4, v{T+1}
    v_add_u32 v{T+2}, {CSB}, v{T+2}
    v_add_u32 v{T}, s21, v{T}
    s_waitcnt lgkmcnt(0)
    s_barrier
    """)
    MU=T+6; RS=T+8
    A(f"v_sub_f32 v{MU}, 0, v{VSUM}")
    if gu: A(f"v_mov_b32 v{RS}, v{VSQ}")
    else: A(f"v_mul_f32 v{RS}, s23, v{VSQ}")
    C=FA
    def norm(t0,t1):
        for t in range(t0,t1):
            for g in range(4): A(f"ds_read_b128 {vr(C+16*(t-t0)+4*g,4)}, v{T+2} offset:{(t*32+8*g)*4}")
        n=(t1-t0)*4
        for t in range(t0,t1):
            for g in range(4):
                n-=1
                A(f"s_waitcnt lgkmcnt({n})")
                for p in range(2):
                    a=ACC+16*t+4*g+2*p; c=C+16*(t-t0)+4*g+2*p
                    A(f"v_pk_fma_f32 {vr(a,2)}, {vr(c,2)}, {vr(MU,2)}, {vr(a,2)} op_sel_hi:[1,0,1]")
                for p in range(2):
                    a=ACC+16*t+4*g+2*p
                    A(f"v_pk_mul_f32 {vr(a,2)}, {vr(a,2)}, {vr(RS,2)} op_sel_hi:[1,0]")
    norm(0,3); norm(3,NT)
    if gu:
        c0=-2*math.sqrt(2/math.pi)*math.log2(math.e); c1=c0*0.044715
        A(f"""v_mul_u32_u24 v{T}, {HO_PITCH}, v{T}
        v_lshl_add_u32 v{T}, v{T+1}, 4, v{T}
        s_lshl_b32 s26, s22, 1
        v_add_u32 v{T}, s26, v{T}
        s_mov_b32 s34, {hx(c1)}
        s_mov_b32 s36, 1.0
        v_mov_b32 v{T+10}, {hx(c0)}""")
        for t in range(NT):
            a=ACC+16*t; E=FA+16*(t&1); O=E+8
            for p in range(4): A(f"v_pk_mul_f32 {vr(E+2*p,2)}, {vr(a+2*p,2)}, {vr(a+2*p,2)}")
            for p in range(4): A(f"v_pk_fma_f32 {vr(E+2*p,2)}, {vr(E+2*p,2)}, s[34:35], {vr(T+10,2)} op_sel_hi:[1,0,0]")
            for p in range(4): A(f"v_pk_mul_f32 {vr(E+2*p,2)}, {vr(E+2*p,2)}, {vr(a+2*p,2)}")
            for i in range(8): A(f"v_exp_f32 v{E+i}, v{E+i}")
            for p in range(4): A(f"v_pk_mul_f32 {vr(a+2*p,2)}, {vr(a+2*p,2)}, {vr(a+8+2*p,2)}")
            for p in range(4): A(f"v_pk_add_f32 {vr(E+2*p,2)}, {vr(E+2*p,2)}, s[36:37] op_sel_hi:[1,0]")
            for i in range(8): A(f"v_rcp_f32 v{E+i}, v{E+i}")
            A("s_nop 0")
            for p in range(4): A(f"v_pk_mul_f32 {vr(a+2*p,2)}, {vr(a+2*p,2)}, {vr(E+2*p,2)}")
            for p in range(4): A(f"v_cvt_pk_bf16_f32 v{O+p}, v{a+2*p}, v{a+2*p+1}")
            A(f"buffer_store_dwordx4 {vr(O,4)}, v{T}, s[4:7], 0 offen offset:{32*t}")
    else:
        A(f"""v_mul_u32_u24 v{T}, 48, v{T}
        v_lshl_add_u32 v{T+1}, v{T+1}, 2, s27
        s_mov_b32 s26, {QKV_PLANE}
        v_mul_lo_u32 v{T+1}, v{T+1}, s26
        v_add_u32 v{T}, v{T}, v{T+1}
        s_mov_b32 s33, 0""")
        for hd in range(4):
            O=FA+12*hd
            for p in range(10): A(f"v_cvt_pk_bf16_f32 v{O+p}, v{ACC+20*hd+2*p}, v{ACC+20*hd+2*p+1}")
            A(f"v_mov_b32 v{O+10}, s29\nv_mov_b32 v{O+11}, s29")
            for p in range(3): A(f"buffer_store_dwordx4 {vr(O+4*p,4)}, v{T}, s[4:7], s33 offen offset:{16*p}")
            A(f"s_add_u32 s33, s33, {QKV_PLANE}")
    A("s_endpgm")
import struct
def hx(f): return "0x%08x"%struct.unpack('<I',struct.pack('<f',f))[0]
def gen(A):
    head(A,"k1_kernel")
    A(f"""
    s_cmp_ge_u32 s2, 256
    s_cbranch_scc1 K1_exit
    s_load_dwordx4 s[40:43], s[0:1], 0
    s_load_dwordx4 s[44:47], s[0:1], 32
    s_load_dwordx2 s[48:49], s[0:1], 72
    v_lshrrev_b32 v1, 6, v0
    v_and_b32 v207, 63, v0
    s_and_b32 s3, s2, 7
    v_readfirstlane_b32 s20, v1
    s_lshr_b32 s4, s2, 3
    s_and_b32 s5, s3, 1
    s_lshr_b32 s6, s3, 1
    s_and_b32 s7, s4, 3
    s_lshl_b32 s5, s5, 2
    s_add_u32 s5, s5, s7
    s_lshr_b32 s4, s4, 2
    s_lshl_b32 s21, s5, 8
    s_lshl_b32 s7, s20, 5
    s_add_u32 s21, s21, s7
    v_lshrrev_b32 v{T}, 2, v207
    v_add_u32 v{T}, s21, v{T}
    v_mul_u32_u24 v{T}, 1280, v{T}
    v_lshrrev_b32 v{T+1}, 4, v207
    v_xor_b32 v{T+1}, v{T+1}, v207
    v_and_b32 v{T+1}, 3, v{T+1}
    v_lshl_add_u32 v{VX0}, v{T+1}, 4, v{T}
    v_add_u32 v{VX1}, 20480, v{VX0}
    v_and_b32 v{T}, 31, v207
    v_lshrrev_b32 v{T+1}, 5, v207
    v_bfe_u32 v{T+2}, v207, 2, 2
    v_xor_b32 v{T+1}, v{T+1}, v{T+2}
    v_lshlrev_b32 v{T}, 6, v{T}
    v_lshl_add_u32 v{T}, v{T+1}, 4, v{T}
    s_mul_i32 s7, s20, {XW}
    v_add_u32 v{VXR0}, s7, v{T}
    v_xor_b32 v{VXR1}, 32, v{VXR0}
    s_mov_b32 s50, s4
    s_mov_b32 s51, s6
    s_waitcnt lgkmcnt(0)
    """)
    srd(A,8,40,2621440)
    A(f"""s_cmp_lt_u32 s50, 3
    s_cbranch_scc0 K1_gu
    s_mul_i32 s51, s51, 3
    s_add_u32 s51, s51, s50
    s_mul_i32 s22, s51, 160
    s_lshl_b32 s27, s51, 3
    s_cmp_lt_u32 s51, 4
    s_cselect_b32 s23, {hx(20**-0.5*math.log2(math.e))}, 1.0
    """)
    srd(A,12,42,640*3840); srd(A,16,42,640*3840-160,160); srd(A,4,48,96*QKV_PLANE)
    variant(A,5,False)
    A(f"""K1_gu:
    s_sub_u32 s50, s50, 3
    s_mul_i32 s52, s51, 5
    s_lshl_b32 s53, s51, 2
    s_add_u32 s53, s53, 2
    s_cmp_lt_u32 s51, 2
    s_cselect_b32 s52, s52, s53
    s_cselect_b32 s53, 5, 4
    s_cmp_ge_u32 s50, s53
    s_cbranch_scc1 K1_exit
    s_add_u32 s52, s52, s50
    s_mul_i32 s22, s52, 96
    """)
    srd(A,12,44,640*3456); srd(A,16,46,640*3456); srd(A,4,48,HO_BYTES,HO_OFF)
    variant(A,6,True)
    A("K1_exit:\ns_endpgm")
```

```python
from common import *
S=0; KF=144; O=198; QF=214; T=220
K2_VG=240; K2_LDS=49152
def gen(A):
    head(A,"k2_kernel")
    A(f"""
    s_cmp_ge_u32 s2, 256
    s_cbranch_scc1 K2_exit
    s_load_dwordx2 s[48:49], s[0:1], 72
    v_lshrrev_b32 v1, 6, v0
    v_and_b32 v239, 63, v0
    s_and_b32 s3, s2, 7
    v_readfirstlane_b32 s20, v1
    s_lshr_b32 s4, s2, 3
    s_and_b32 s5, s4, 3
    s_lshl_b32 s3, s3, 2
    s_add_u32 s21, s3, s5
    s_lshr_b32 s22, s4, 2
    s_mul_i32 s23, s21, {QKV_PLANE}
    s_lshl_b32 s24, s22, 8
    s_lshl_b32 s25, s20, 5
    s_add_u32 s26, s24, s25
    s_sub_u32 s27, s24, 256
    s_mul_i32 s27, s27, 48
    s_mul_i32 s28, s20, 3072
    s_add_u32 s27, s27, s28
    s_cmp_lt_i32 s27, 0
    s_cselect_b32 s27, 0x40000000, s27
    v_lshl_add_u32 v{T}, v239, 4, s27
    v_and_b32 v{T+1}, 31, v239
    v_lshrrev_b32 v{T+2}, 5, v239
    v_add_u32 v{T+3}, s26, v{T+1}
    v_mul_u32_u24 v{T+4}, 48, v{T+3}
    v_lshlrev_b32 v{T+5}, 30, v{T+2}
    v_add3_u32 v{T+5}, v{T+5}, v{T+4}, 32
    v_lshl_add_u32 v{T+4}, v{T+2}, 4, v{T+4}
    s_waitcnt lgkmcnt(0)
    s_add_u32 s48, s48, s23
    s_addc_u32 s49, s49, 0
    """)
    srd(A,8,48,QKV_PLANE); srd(A,12,48,QKV_PLANE,32*QKV_PLANE); srd(A,16,48,QKV_PLANE,64*QKV_PLANE)
    A("s_mov_b32 m0, s28\ns_nop 0")
    for j in range(3): A(f"buffer_load_dwordx4 v{T}, s[12:15], 0 offen offset:{1024*j} lds")
    A(f"buffer_load_dwordx4 {vr(QF,4)}, v{T+4}, s[8:11], 0 offen\nbuffer_load_dwordx2 {vr(QF+4,2)}, v{T+5}, s[8:11], 0 offen")
    A("s_add_u32 m0, s28, 24576\ns_nop 0")
    for j in range(3): A(f"buffer_load_dwordx4 v{T}, s[16:19], 0 offen offset:{1024*j} lds")
    A(f"s_sub_u32 s48, s48, s23\ns_subb_u32 s49, s49, 0")
    srd(A,4,48,HO_BYTES,HO_OFF)
    A(f"v_lshlrev_b32 v{T+6}, 2, v{T+2}\nv_sub_u32 v{T+6}, v{T+6}, v{T+1}\nv_mov_b32 v{T+7}, 0xf149f2ca")
    for r in range(16): A(f"v_cmp_lt_i32 vcc, {-(8*(r>>2)+(r&3))}, v{T+6}\ns_mov_b64 {sr(52+2*r,2)}, vcc")
    for r in range(16):
        A(f"v_cndmask_b32 v{S+r}, v{T+7}, 0, {sr(52+2*r,2)}\nv_cndmask_b32 v{S+128+r}, 0, v{T+7}, {sr(52+2*r,2)}")
    for r in range(16): A(f"v_mov_b32 v{O+r}, 0")
    A(f"""v_add_u32 v{T+8}, s25, v{T+1}
    v_mul_u32_u24 v{T+8}, 48, v{T+8}
    v_add_u32 v{T+9}, 32, v{T+8}
    v_lshl_add_u32 v{T+8}, v{T+2}, 4, v{T+8}
    v_bfe_u32 v{T+10}, v239, 2, 2
    v_lshl_add_u32 v{T+10}, v{T+2}, 2, v{T+10}
    v_add_u32 v{T+10}, s25, v{T+10}
    v_mul_u32_u24 v{T+10}, 48, v{T+10}
    v_bfe_u32 v{T+11}, v239, 4, 1
    v_and_b32 v{T+12}, 3, v239
    v_lshl_add_u32 v{T+11}, v{T+11}, 2, v{T+12}
    v_lshlrev_b32 v{T+11}, 2, v{T+11}
    s_mov_b32 s30, 0x55543120
    v_lshrrev_b32 v{T+11}, v{T+11}, s30
    v_and_b32 v{T+11}, 15, v{T+11}
    v_lshl_add_u32 v{T+10}, v{T+11}, 3, v{T+10}
    v_add_u32 v{T+10}, 24576, v{T+10}
    v_mul_u32_u24 v{T+3}, {HO_PITCH}, v{T+3}
    s_mul_i32 s30, s21, 40
    s_add_u32 s30, s30, 3456
    v_add_u32 v{T+3}, s30, v{T+3}
    v_lshlrev_b32 v{T+5}, 30, v{T+2}
    v_add3_u32 v{T+5}, v{T+5}, v{T+3}, 32
    v_lshl_add_u32 v{T+3}, v{T+2}, 4, v{T+3}
    s_waitcnt vmcnt(3)
    s_barrier
    """)
    for t in range(9): A(f"ds_read_b128 {vr(KF+6*t,4)}, v{T+8} offset:{t*1536}")
    order=[1,2,3,4,5,6,7,0,8]
    for t in range(5): A(f"ds_read_b64 {vr(KF+6*t+4,2)}, v{T+9} offset:{t*1536}")
    for t in range(9):
        out = 14-(t+1) + max(0,min(t,4))
        A(f"s_waitcnt lgkmcnt({out})")
        c = vr(S+16*t,16) if t in (0,8) else "0"
        A(f"v_mfma_f32_32x32x16_bf16 {vr(S+16*t,16)}, {vr(KF+6*t,4)}, {vr(QF,4)}, {c}")
        if t<4: A(f"ds_read_b64 {vr(KF+6*(t+5)+4,2)}, v{T+9} offset:{(t+5)*1536}")
    A("s_waitcnt lgkmcnt(0)")
    for t in range(9): A(f"v_mfma_f32_32x32x8_bf16 {vr(S+16*t,16)}, {vr(KF+6*t+4,2)}, {vr(QF+4,2)}, {vr(S+16*t,16)}")
    A("s_waitcnt vmcnt(0)\ns_barrier")
    VF=KF; P=KF+32
    def vread(t):
        b=VF+8*(t%4)
        return [f"ds_read_b64_tr_b16 {vr(b+4*u+2*z,2)}, v{T+10} offset:{t*1536+(16*u+8*z)*48}" for u in range(2) for z in range(2)]
    for t in range(3):
        for x in vread(t): A(x)
    A("s_cmp_lg_u32 s22, 0\ns_cbranch_scc1 K2_nofix\ns_nop 7\ns_nop 7\ns_sub_u32 s31, 8, s20")
    for t in range(8):
        A(f"s_cmp_le_u32 s31, {t}\ns_cbranch_scc1 K2_nofix")
        for r in range(16): A(f"v_mov_b32 v{S+16*t+r}, v{T+7}")
    A("K2_nofix:")
    M=T+12
    for t in range(9):
        for p in range(8):
            m=M+(p&3); a=S+16*t+2*p
            if t==0 and p<4: A(f"v_max_f32 v{m}, v{a}, v{a+1}")
            else: A(f"v_max3_f32 v{m}, v{a}, v{a+1}, v{m}")
    A(f"""v_max3_f32 v{M}, v{M}, v{M+1}, v{M+2}
    v_max_f32 v{M}, v{M}, v{M+3}
    v_mov_b32 v{M+1}, v{M}
    s_nop 1
    v_permlane32_swap_b32 v{M}, v{M+1}
    s_nop 1
    v_max_f32 v{M}, v{M}, v{M+1}""")
    for t in range(9):
        a=S+16*t; Pb=P+8*(t&1)
        for p in range(8): A(f"v_pk_add_f32 {vr(a+2*p,2)}, {vr(a+2*p,2)}, {vr(M,2)} op_sel_hi:[1,0] neg_lo:[0,1] neg_hi:[0,1]")
        for i in range(16): A(f"v_exp_f32 v{a+i}, v{a+i}")
        if t+3<9:
            for x in vread(t+3): A(x)
        else: A("s_nop 0")
        for p in range(8): A(f"v_cvt_pk_bf16_f32 v{Pb+p}, v{a+2*p}, v{a+2*p+1}")
        A(f"s_waitcnt lgkmcnt({4*min(3,8-t)})\ns_nop 0")
        b=VF+8*(t%4)
        for u in range(2): A(f"v_mfma_f32_32x32x16_bf16 {vr(O,16)}, {vr(b+4*u,4)}, {vr(Pb+4*u,4)}, {vr(O,16)}")
    A(f"s_nop 7\ns_nop 4\nv_rcp_f32 v{M}, v{O+12}\ns_nop 0")
    for p in range(6): A(f"v_pk_mul_f32 {vr(O+2*p,2)}, {vr(O+2*p,2)}, {vr(M,2)} op_sel_hi:[1,0]")
    for p in range(6): A(f"v_cvt_pk_bf16_f32 v{S+p}, v{O+2*p}, v{O+2*p+1}")
    A(f"buffer_store_dwordx4 {vr(S,4)}, v{T+3}, s[4:7], 0 offen\nbuffer_store_dwordx2 {vr(S+4,2)}, v{T+5}, s[4:7], 0 offen")
    A("K2_exit:\ns_endpgm")
```

```python
from common import *
ACC=0; F0=80; F1=116; XR=152; VA=162; VW=166; VRA=171; VR1=172; VR2=173; T=174
K3_VG=192; SL=9216; K3_LDS=4*4*SL
def gen(A):
    head(A,"k3_kernel")
    A(f"""
    s_cmp_ge_u32 s2, 256
    s_cbranch_scc1 K3_exit
    s_load_dwordx2 s[40:41], s[0:1], 0
    s_load_dwordx2 s[42:43], s[0:1], 16
    s_load_dwordx4 s[44:47], s[0:1], 48
    s_load_dwordx2 s[48:49], s[0:1], 72
    v_lshrrev_b32 v1, 6, v0
    v_and_b32 v191, 63, v0
    s_and_b32 s3, s2, 7
    v_readfirstlane_b32 s20, v1
    s_lshr_b32 s4, s2, 3
    s_lshr_b32 s5, s3, 1
    s_lshl_b32 s5, s5, 3
    s_and_b32 s6, s4, 7
    s_add_u32 s5, s5, s6
    s_lshl_b32 s21, s5, 6
    s_and_b32 s3, s3, 1
    s_lshl_b32 s3, s3, 2
    s_lshr_b32 s4, s4, 3
    s_add_u32 s3, s3, s4
    s_mul_i32 s22, s3, 160
    s_mul_i32 s24, s20, {4*SL}
    s_mul_i32 s26, s20, 19
    s_cmp_eq_u32 s20, 3
    s_cselect_b32 s26, 56, s26
    s_add_u32 s27, s26, 19
    s_cmp_ge_u32 s20, 2
    s_cselect_b32 s3, 1, 0
    s_sub_u32 s27, s27, s3
    s_mov_b32 s3, 0x78
    v_lshrrev_b32 v{T}, 4, v191
    v_lshlrev_b32 v{T+1}, 1, v{T}
    v_lshrrev_b32 v{T+1}, v{T+1}, s3
    v_xor_b32 v{T+1}, v{T+1}, v191
    v_and_b32 v{T+1}, 3, v{T+1}
    v_lshrrev_b32 v{T+2}, 2, v191
    v_add_u32 v{T+2}, s21, v{T+2}
    v_mul_u32_u24 v{T+2}, {HO_PITCH}, v{T+2}
    v_lshl_add_u32 v{VA}, v{T+1}, 4, v{T+2}
    v_add_u32 v{VA+1}, {16*HO_PITCH}, v{VA}
    v_add_u32 v{VA+2}, {32*HO_PITCH}, v{VA}
    v_add_u32 v{VA+3}, {48*HO_PITCH}, v{VA}
    v_bfe_u32 v{T+1}, v191, 3, 1
    v_bfe_u32 v{T+2}, v191, 1, 2
    v_lshl_add_u32 v{T+1}, v{T+1}, 3, v{T+2}
    v_mul_u32_u24 v{T+1}, 1280, v{T+1}
    v_and_b32 v{T+2}, 1, v191
    v_lshl_add_u32 v{T+1}, v{T+2}, 4, v{T+1}
    v_add_u32 v{T+1}, s22, v{T+1}
    v_lshl_add_u32 v{VW}, v{T}, 5, v{T+1}
    v_add_u32 v{VW+1}, {16*1280}, v{VW}
    v_add_u32 v{VW+2}, {4*1280}, v{VW}
    v_add_u32 v{VW+3}, {20*1280}, v{VW}
    v_lshrrev_b32 v{T+2}, 5, v191
    v_mul_u32_u24 v{T+3}, {4*1280}, v{T+2}
    v_and_b32 v{T+4}, 1, v{T}
    v_mul_u32_u24 v{T+5}, {16*1280}, v{T+4}
    v_add3_u32 v{VW+4}, v{T+1}, v{T+3}, v{T+5}
    v_add_u32 v{VW+4}, 128, v{VW+4}
    v_bfe_u32 v{T+1}, v191, 2, 2
    v_lshlrev_b32 v{T+3}, 1, v{T+1}
    v_lshrrev_b32 v{T+3}, v{T+3}, s3
    v_xor_b32 v{T+3}, v{T+3}, v{T}
    v_and_b32 v{T+3}, 3, v{T+3}
    v_and_b32 v{T+5}, 15, v191
    v_lshlrev_b32 v{T+6}, 6, v{T+5}
    v_lshl_add_u32 v{T+3}, v{T+3}, 4, v{T+6}
    v_add_u32 v{VRA}, s24, v{T+3}
    v_and_b32 v{T+3}, 31, v191
    v_lshlrev_b32 v{T+3}, 3, v{T+3}
    v_add_u32 v{T+3}, s24, v{T+3}
    v_lshl_add_u32 v{VR1}, v{T+2}, 10, v{T+3}
    v_add_u32 v{VR1}, 4096, v{VR1}
    v_lshl_add_u32 v{VR2}, v{T+2}, 8, v{T+3}
    v_add_u32 v{VR2}, 8192, v{VR2}
    s_lshl_b32 s3, s20, 4
    s_add_u32 s3, s3, s21
    v_add_u32 v{T+5}, s3, v{T+5}
    v_mul_u32_u24 v{T+5}, 1280, v{T+5}
    v_lshl_add_u32 v{T+5}, v{T}, 3, v{T+5}
    v_add_u32 v{T+8}, s22, v{T+5}
    s_waitcnt lgkmcnt(0)
    """)
    srd(A,4,40,2621440); srd(A,8,48,HO_BYTES,HO_OFF); srd(A,16,46,2621440)
    for t in range(5): A(f"buffer_load_dwordx2 {vr(XR+2*t,2)}, v{T+8}, s[4:7], 0 offen offset:{32*t}")
    A(f"""s_cmp_ge_u32 s26, 54
    s_cselect_b32 s12, s42, s44
    s_cselect_b32 s13, s43, s45
    s_mov_b32 s14, {1728*1280}
    s_cselect_b32 s14, {640*1280}, s14
    s_mov_b32 s15, 0x20000
    s_cselect_b32 s3, 54, 0
    s_sub_u32 s3, s26, s3
    s_mul_i32 s31, s3, {32*1280}
    s_lshl_b32 s30, s26, 6""")
    def dma(sl):
        L=[]
        for j in range(4): L.append(f"s_add_u32 m0, s24, {sl*SL+j*1024}\ns_nop 0\nbuffer_load_dwordx4 v{VA+j}, s[8:11], s30 offen lds")
        for j in range(5): L.append(f"s_add_u32 m0, s24, {sl*SL+4096+j*1024}\ns_nop 0\nbuffer_load_dwordx4 v{VW+j}, s[12:15], s31 offen lds")
        L[-1]+=f"""
        s_add_u32 s26, s26, 1
        s_add_u32 s30, s30, 64
        s_add_u32 s31, s31, {32*1280}
        s_cmp_eq_u32 s26, 54
        s_cselect_b32 s12, s42, s12
        s_cselect_b32 s13, s43, s13
        s_cselect_b32 s14, {640*1280}, s14
        s_cselect_b32 s31, 0, s31
        s_cmp_ge_u32 s26, s27
        s_cselect_b32 s14, 0, s14
        s_cselect_b32 s10, 0, s10"""
        return L
    def reads(F,sl):
        L=[f"ds_read_b128 {vr(F+4*j,4)}, v{VRA} offset:{sl*SL+j*1024}" for j in range(4)]
        for t in range(5):
            for e in range(2):
                if t<4: L.append(f"ds_read_b64_tr_b16 {vr(F+16+4*t+2*e,2)}, v{VR1} offset:{sl*SL+e*2048+t*256}")
                else: L.append(f"ds_read_b64_tr_b16 {vr(F+16+4*t+2*e,2)}, v{VR2} offset:{sl*SL+e*512}")
        return L
    def mf(F): return [f"v_mfma_f32_16x16x32_bf16 {vr(ACC+4*(5*j+t),4)}, {vr(F+16+4*t,4)}, {vr(F+4*j,4)}, {vr(ACC+4*(5*j+t),4)}" for t in range(5) for j in range(4)]
    for sl in range(4):
        for d in dma(sl): A(d)
    for r in range(80): A(f"v_mov_b32 v{ACC+r}, 0")
    A("s_waitcnt vmcnt(27)")
    for x in reads(F0,0): A(x)
    A("s_mov_b32 s28, 0\nK3_loop:")
    for sl in range(4):
        F=F1 if sl&1 else F0; G=F0 if sl&1 else F1
        A("s_waitcnt vmcnt(18) lgkmcnt(0)")
        r=reads(G,(sl+1)%4); d=dma(sl); fill=[]
        while r or d:
            if r: fill.append(r.pop(0))
            if d: fill.append(d.pop(0))
            if r: fill.append(r.pop(0))
        for x in interleave(mf(F),fill): A(x)
    A("s_add_u32 s28, s28, 1\ns_cmp_lt_u32 s28, 5\ns_cbranch_scc1 K3_loop")
    A(f"""s_waitcnt vmcnt(0) lgkmcnt(0)
    s_mul_i32 s3, s20, 20480
    v_lshl_add_u32 v{T}, v191, 4, s3
    s_mul_i32 s3, s20, 5120
    v_lshl_add_u32 v{T+1}, v191, 4, s3
    v_add_u32 v{T+2}, 40960, v{T+1}
    s_nop 7
    s_barrier""")
    for i in range(20): A(f"ds_write_b128 v{T}, {vr(ACC+4*i,4)} offset:{i*1024}")
    A("s_waitcnt lgkmcnt(0)\ns_barrier")
    def rr(t):
        for w in range(4): A(f"ds_read_b128 {vr(16*t+4*w,4)}, v{T+1+(w>>1)} offset:{(w&1)*20480+t*1024}")
    rr(0); rr(1); rr(2)
    for t in range(5):
        b=16*t
        A(f"s_waitcnt lgkmcnt({[8,8,8,4,0][t]})")
        if t<2: rr(t+3)
        A(f"""v_lshlrev_b32 v{F0}, 16, v{XR+2*t}
        v_and_b32 v{F0+1}, 0xffff0000, v{XR+2*t}
        v_lshlrev_b32 v{F0+2}, 16, v{XR+2*t+1}
        v_and_b32 v{F0+3}, 0xffff0000, v{XR+2*t+1}""")
        for p in range(2):
            A(f"""v_pk_add_f32 {vr(b+2*p,2)}, {vr(b+2*p,2)}, {vr(b+4+2*p,2)}
            v_pk_add_f32 {vr(b+8+2*p,2)}, {vr(b+8+2*p,2)}, {vr(b+12+2*p,2)}
            v_pk_add_f32 {vr(b+2*p,2)}, {vr(b+2*p,2)}, {vr(F0+2*p,2)}
            v_pk_add_f32 {vr(b+2*p,2)}, {vr(b+2*p,2)}, {vr(b+8+2*p,2)}""")
        A(f"v_cvt_pk_bf16_f32 v{b+4}, v{b}, v{b+1}\nv_cvt_pk_bf16_f32 v{b+5}, v{b+2}, v{b+3}")
        A(f"buffer_store_dwordx2 {vr(b+4,2)}, v{T+8}, s[16:19], 0 offen offset:{32*t}")
    A("K3_exit:\ns_endpgm")
```

```python
import sys; sys.path.insert(0,'gen')
from common import *
import k1,k2,k3
N='parallel_sum__sliding_block__geglu_ffn__prompt'
hdr=open(f'cdna_kernels/{N}.s.ref').read().split('; Override')[0]
A=Asm()
ks=[("k1_kernel",512,k1.K1_LDS,k1.K1_VG,k1),("k2_kernel",512,k2.K2_LDS,k2.K2_VG,k2),("k3_kernel",256,k3.K3_LDS,k3.K3_VG,k3)]
s=hdr
for n,b,l,v,m in ks: s+=f"; @launch kernel={n} grid=(256,1,1) block=({b},1,1) lds={l}\n"
s+='.amdgcn_target "amdgcn-amd-amdhsa--gfx950"\n.text\n'
for n,b,l,v,m in ks: m.gen(A)
s+=A.txt()+'.section .rodata,"a"\n'
for n,b,l,v,m in ks: s+=desc(n,v)
out=sys.argv[1] if len(sys.argv)>1 else f'cdna_kernels/{N}.s'
open(out,'w').write(s)
```

```python
class Asm:
    def __init__(s): s.L=[]
    def __call__(s, t):
        for l in t.strip('\n').split('\n'): s.L.append('  '+l.strip() if not l.strip().endswith(':') else l.strip())
    def txt(s): return '\n'.join(s.L)+'\n'
def vr(a,n): return f"v[{a}:{a+n-1}]" if n>1 else f"v{a}"
def sr(a,n): return f"s[{a}:{a+n-1}]" if n>1 else f"s{a}"
def srd(A, d, base, nbytes, off=0):
    if off:
        A(f"s_add_u32 s{d}, s{base}, {off}\ns_addc_u32 s{d+1}, s{base+1}, 0")
    else:
        A(f"s_mov_b32 s{d}, s{base}\ns_mov_b32 s{d+1}, s{base+1}")
    A(f"s_mov_b32 s{d+2}, {nbytes}\ns_mov_b32 s{d+3}, 0x20000")
def interleave(main, fill):
    out=[]; n=len(main); m=len(fill); k=0
    for i,x in enumerate(main):
        out.append(x)
        tgt=(m*(i+1)+n-1)//n
        while k<tgt: out.append(fill[k]); k+=1
    return out
import os
STAMP=int(os.environ.get('STAMP','0'))
def stamp(A, i):
    if STAMP: A(f"{os.environ.get('CLK','s_memrealtime')} s[{84+2*i}:{85+2*i}]")
_sc=[0]
def stamp_out(A, kid, ln, tv):
    if not STAMP: return
    _sc[0]+=1
    stamp(A,5)
    A(f"s_load_dwordx2 s[76:77], s[0:1], 72\ns_waitcnt lgkmcnt(0)\ns_cmp_lg_u32 s20, {STAMP-1}\ns_cbranch_scc1 ST_{_sc[0]}")
    A(f"s_add_u32 s76, s76, 0x2000000\ns_addc_u32 s77, s77, 0\ns_mov_b32 s78, 0x100000\ns_mov_b32 s79, 0x20000")
    for i in range(6): A(f"v_writelane_b32 v{tv}, s{84+2*i}, {i}")
    A(f"s_lshl_b32 s75, s2, 5\ns_add_u32 s75, s75, {kid*8192}\nv_lshl_add_u32 v{tv+1}, v{ln}, 2, s75\ns_mov_b64 exec, 63\nbuffer_store_dword v{tv}, v{tv+1}, s[76:79], 0 offen\nST_{_sc[0]}:")
ST_OFF=0x1800000; FL_OFF=16384; CSP_OFF=16384+3*32768; WP_OFF=0x1400000; WP_BYTES=8*74*5120; QKV_PLANE=98304; HO_OFF=0x900000; HO_PITCH=4736; HO_BYTES=2048*4736
def desc(name, vg, sg=100):
    return f""".p2align 6
.amdhsa_kernel {name}
  .amdhsa_next_free_vgpr {vg}
  .amdhsa_next_free_sgpr {sg}
  .amdhsa_accum_offset {(vg+3)//4*4}
  .amdhsa_group_segment_fixed_size 0
  .amdhsa_kernarg_size 80
  .amdhsa_user_sgpr_count 2
  .amdhsa_user_sgpr_kernarg_segment_ptr 1
  .amdhsa_system_sgpr_workgroup_id_x 1
.end_amdhsa_kernel
"""
def head(A,name):
    A(f".globl {name}\n.p2align 8\n.type {name},@function\n{name}:")

EXP=os.environ.get('EXP','')

def nonce_put(A, t, dbg=68):
    A(f"""s_memrealtime s[80:81]
    s_or_b32 s26, s2, s20
    s_cmp_eq_u32 s26, 0
    s_cselect_b32 s26, 0, 0x40000000
    v_mov_b32 v{t+1}, 0
    s_waitcnt lgkmcnt(0)
    s_or_b32 s80, s80, 1
    v_mov_b32 v{t}, s80
    buffer_store_dword v{t}, v{t+1}, s[{dbg}:{dbg+3}], s26 offen sc1""")
def nonce_get(A, P, t, wave=0, dbg=68):
    A(f"""s_cmp_lg_u32 s20, {wave}
    s_cbranch_scc1 NG{P}_done
    v_mov_b32 v{t}, 0
    s_mov_b32 s26, 0x100000
    NG{P}_loop:
    buffer_load_dword v{t+1}, v{t}, s[{dbg}:{dbg+3}], 0 offen sc1
    s_sub_u32 s26, s26, 1
    s_cbranch_scc1 NG{P}_done
    s_waitcnt vmcnt(0)
    v_readfirstlane_b32 s82, v{t+1}
    s_cmp_eq_u32 s82, 0
    s_cbranch_scc1 NG{P}_loop
    NG{P}_done:""")
def flag_put(A, t, ln, sidx, off, wave=0, st=64):
    A(f"""v_cmp_eq_u32 vcc, 0, v{ln}
    v_mov_b32 v{t}, 0x40000000
    s_lshl_b32 s26, s{sidx}, 7
    s_add_u32 s26, s26, {off}
    s_cmp_eq_u32 s20, {wave}
    s_cselect_b32 s26, s26, 0x40000000
    v_mov_b32 v{t+1}, s82
    v_cndmask_b32 v{t}, v{t}, 0, vcc
    buffer_store_dword v{t+1}, v{t}, s[{st}:{st+3}], s26 offen sc1""")
def flag_wait(A, P, t, off, st=64):
    A(f"""v_lshlrev_b32 v{t}, 7, v{t}
    s_mov_b32 s26, 0x100000
    s_mov_b32 s83, {off}
    FP{P}_loop:
    buffer_load_dword v{t+1}, v{t}, s[{st}:{st+3}], s83 offen sc1
    s_sub_u32 s26, s26, 1
    s_cbranch_scc1 FP{P}_done
    s_waitcnt vmcnt(0)
    v_cmp_ne_u32 vcc, s82, v{t+1}
    s_cbranch_vccnz FP{P}_loop
    FP{P}_done:""")
```

```python
from common import *
import math
NS=5; XW=3*4096; WB=8*XW; WS=12416; CSB=WB+NS*WS; K1_LDS=CSB+3328
ACC=0; FA=96; FB=124; CSR=152; VSUM=158; VSQ=159; VCS=160
VX=184; VW=165; VXR=188; VWR=168; VCR=169; T=170; U=192; PF=200; VS2=163; VQ2=164
XS=152; WL=208; END=228
K1_VG=228
def variant(A, NT, gu):
    P='G' if gu else 'Q'
    pitch=3456 if gu else 3840
    RD=NT*1024+128
    A(f"""
    s_mul_i32 s24, s20, {XW}
    s_mul_i32 s25, s20, {NT*128}
    s_add_u32 s25, s25, {WB}
    v_lshrrev_b32 v{T}, 3, v207
    v_bfe_u32 v{T+1}, v207, 1, 2
    v_and_b32 v{T+2}, 1, v207
    s_lshl_b32 s26, s20, 2
    v_add_u32 v{T+1}, s26, v{T+1}
    v_mul_u32_u24 v{T+1}, {pitch}, v{T+1}
    v_lshlrev_b32 v{T}, 5, v{T}
    v_lshl_add_u32 v{T}, v{T+2}, 4, v{T}
    s_lshl_b32 s26, s22, 1
    v_add3_u32 v{VW}, v{T}, v{T+1}, s26
    v_lshrrev_b32 v{T}, 5, v207
    v_bfe_u32 v{T+1}, v207, 4, 1
    v_and_b32 v{T+2}, 1, v207
    v_bfe_u32 v{T+3}, v207, 2, 2
    v_bfe_u32 v{T+4}, v207, 1, 1
    v_mul_u32_u24 v{T+5}, {RD}, v{T+1 if gu else T+2}
    v_lshl_add_u32 v{T+5}, v{T+2 if gu else T+1}, 4, v{T+5}
    v_lshl_add_u32 v{T+5}, v{T+3}, 5, v{T+5}
    v_lshl_add_u32 v{T+5}, v{T+4}, 3, v{T+5}
    v_mul_u32_u24 v{T+6}, {2*NT*128}, v{T}
    v_add_u32 v{VWR}, {WB}, v{T+5}
    v_add_u32 v{VWR}, v{T+6}, v{VWR}
    s_lshr_b32 s56, s20, 2
    s_mul_i32 s26, s56, {3*128 if gu else 0}
    v_add_u32 v{VWR}, s26, v{VWR}
    """)
    ehi = 0xffff if gu else 0xff
    def dmax(g):
        n=g>>1; j0=2*(g&1)
        return [f"s_add_u32 m0, s24, {(n%3)*4096+(j0+j)*1024}\ns_movk_i32 s30, {n*128}\nbuffer_load_dwordx4 v{VX+j0+j}, s[8:11], s30 offen lds" for j in range(2)]
    def dmaw(st):
        sl=st%NS
        return [f"s_add_u32 m0, s25, {sl*WS+R*RD}\ns_mov_b32 s31, {st*32*pitch}\ns_mov_b32 exec_hi, {ehi}\nbuffer_load_dwordx4 v{VW}, s[{12+4*R}:{15+4*R}], s31 offen lds\ns_mov_b32 exec_hi, -1" for R in range(2)]
    for st in range(4):
        if st==0:
            for d in dmaw(0)+dmax(0)+dmax(1): A(d)
            A('s_barrier')
        elif st==1:
            for d in dmaw(1): A(d)
        else:
            for d in dmax(st)+dmaw(st): A(d)
    nonce_put(A,T)
    rowload(A)
    NC=2*NT
    A(f"""v_and_b32 v{T}, 15, v207
    v_lshrrev_b32 v{T+1}, 4, v207
    s_and_b32 s3, s20, 3
    s_lshl_b32 s26, s3, 2
    s_mul_i32 s33, s57, 80
    s_add_u32 s26, s26, s33
    v_add_u32 v{T+2}, s26, v{T+1}
    v_mul_u32_u24 v{T+2}, {pitch}, v{T+2}
    v_lshl_add_u32 v{T+2}, v{T}, 4, v{T+2}
    s_lshl_b32 s26, s22, 1
    v_add_u32 v{T+2}, s26, v{T+2}
    v_cmp_gt_u32 vcc, {NC}, v{T}
    v_mov_b32 v{T+3}, 0x40000000
    s_cmp_eq_u32 s56, 0
    s_cselect_b32 s60, s12, s16
    s_cselect_b32 s61, s13, s17
    s_cselect_b32 s62, s14, s18
    s_mov_b32 s63, 0x20000
    v_cndmask_b32 v{T+2}, v{T+3}, v{T+2}, vcc""")
    for i in range(5): A(f"s_mov_b32 s26, {16*i*pitch}\nbuffer_load_dwordx4 {vr(WL+4*i,4)}, v{T+2}, s[60:63], s26 offen")
    A(f"""v_lshrrev_b32 v{T+2}, 1, v{T}
    v_and_b32 v{T}, 1, v{T}
    v_lshlrev_b32 v{T+2}, 7, v{T+2}
    v_lshl_add_u32 v{T+2}, v{T}, {4 if gu else 6}, v{T+2}
    v_lshrrev_b32 v{T}, 1, v{T+1}
    v_lshl_add_u32 v{T+2}, v{T}, 5, v{T+2}
    v_and_b32 v{T}, 1, v{T+1}
    v_lshl_add_u32 v{T+2}, v{T}, 3, v{T+2}
    s_lshl_b32 s26, s56, {6 if gu else 4}
    s_mul_i32 s3, s3, 768
    s_add_u32 s26, s26, s3
    s_add_u32 s26, s26, {CSB}
    v_add_u32 v{T+2}, s26, v{T+2}
    v_mov_b32 v{T+3}, {CSB+3072}
    v_cndmask_b32 v{VCR}, v{T+3}, v{T+2}, vcc
    s_mov_b32 s29, 0x3f803f80""")
    for r in range(ACC,ACC+NT*16): A(f"v_mov_b32 v{r}, 0")
    NX=2 if gu else 1; NW_=3 if gu else 5
    def reads(F, st, ks):
        sl=st%NS; L=[]
        xs=[f"ds_read_b128 {vr(F+4*j,4)}, v{VXR+2*(st&1)+ks} offset:{((st>>1)%3)*4096+j*XW}" for j in range(NX)]
        for t in range(NW_):
            if t<NX: L.append(xs[t])
            for e in range(2):
                L.append(f"ds_read_b64_tr_b16 {vr(F+8+4*t+2*e,2)}, v{VWR} offset:{sl*WS+((4*ks+e)*NT+t)*128}")
        return L if 'noread' not in EXP else []
    def mf(F,z=False): return [f"v_mfma_f32_32x32x16_bf16 {vr(ACC+16*(NW_*j+t),16)}, {vr(F+8+4*t,4)}, {vr(F+4*j,4)}, {vr(ACC+16*(NW_*j+t),16)}" for t in range(NW_) for j in range(NX)]
    def half(m, rd, extra):
        out=[]; per=(len(rd)+2)//3
        for i,x in enumerate(m):
            out.append(x)
            out+=rd[:per]; rd=rd[per:]
            if i>=2 and extra:
                n=(len(extra)+len(m)-1-i)//(len(m)-i); out+=extra[:n]; extra=extra[n:]
        return out+rd+extra
    SS=[int(x) for x in os.environ.get('SS','').split(',') if x]
    if not SS: stamp(A,1)
    if 'skipdma' in EXP: dmax=lambda g: []; dmaw=lambda g: []
    if 'nomfma' in EXP: mf=lambda F: ["s_nop 0"]*(NX*NW_)
    log=['w0','w0','x0','x0','x1','x1','w1','w1','x2','x2','w2','w2','x3','x3','w3','w3']+['p']*8
    for st in range(20):
        need={f"w{st}",f"x{st&~1}",f"x{st|1}"}
        if st==4: need.add('p')
        if st==19: need.add('q')
        if st==10: need.add('s')
        last=max([i for i,x in enumerate(log) if x in need]+[-1])
        A(f"s_waitcnt vmcnt({min(63,len(log)-1-last)}) lgkmcnt(0)\ns_barrier")
        if st in SS: stamp(A,1+SS.index(st))
        dx=dmax(st+4) if st+4<20 else []; dw=dmaw(st+4) if st+4<20 else []
        ex=[]; ex2=[]
        if st==4:
            B=Asm(); rowstat(B); ex=[l for l in B.L]
            for e in range(8):
                u=U+e
                for i in range(5):
                    r=WL+4*i+(e>>1); d=u if i==0 else T+(i&1)
                    ex.append(f"v_and_b32 v{d}, s32, v{r}" if e&1 else f"v_lshlrev_b32 v{d}, 16, v{r}")
                    if i: ex.append(f"v_add_f32 v{u}, v{u}, v{d}")
            ex.append("s_nop 1")
            ex+=[f"v_permlane32_swap_b32 v{U+i}, v{U+4+i}" for i in range(4)]+["s_nop 1"]
            ex+=[f"v_add_f32 v{U+i}, v{U+i}, v{U+4+i}" for i in range(4)]+["s_nop 1"]
            ex+=[f"v_permlane16_swap_b32 v{U+i}, v{U+2+i}" for i in range(2)]+["s_nop 1"]
            ex+=[f"v_add_f32 v{U+i}, v{U+i}, v{U+2+i}" for i in range(2)]
            ex.append(f"ds_write_b64 v{VCR}, {vr(U,2)}")
            n=(len(ex)+5)//6; parts=["\n".join(ex[i:i+n]) for i in range(0,len(ex),n)]
            ex=parts[:3]; ex2=parts[3:]
        if st==5:
            ex=[f"""v_lshl_add_u32 v{U}, s20, 6, v207
            v_cmp_gt_u32 vcc, 192, v{U}
            v_lshlrev_b32 v{U}, 2, v{U}
            v_add_u32 v{U+1}, {CSB}, v{U}
            ds_read_b32 v{U+2}, v{U+1}
            ds_read_b32 v{U+3}, v{U+1} offset:768
            ds_read_b32 v{U+4}, v{U+1} offset:1536
            ds_read_b32 v{U+5}, v{U+1} offset:2304
            v_mov_b32 v{U+1}, 0x40000000
            s_lshl_b32 s26, s58, 3
            s_add_u32 s26, s26, s57
            s_mul_i32 s33, s26, 768
            s_add_u32 s33, s33, {CSP_OFF}
            v_cndmask_b32 v{U}, v{U+1}, v{U}, vcc"""]
            ex2=[f"""v_add_f32 v{U+2}, v{U+2}, v{U+3}
            v_add_f32 v{U+4}, v{U+4}, v{U+5}
            v_add_f32 v{U+2}, v{U+2}, v{U+4}
            buffer_store_dword v{U+2}, v{U}, s[64:67], s33 offen sc1"""]
        if st==7:
            B=Asm(); nonce_get(B,P,U); ex=["\n".join(B.L)]
        if st==10:
            B=Asm(); flagset(B,P); ex=["\n".join(B.L)]; log+=['f']
        if st==15:
            B=Asm(); flagpoll(B,P); ex=["\n".join(B.L)]
        if st==16:
            ex=[f"""v_and_b32 v{U}, 31, v207
            v_add_u32 v{U}, s59, v{U}
            v_lshlrev_b32 v{U}, 3, v{U}
            s_mul_i32 s33, s58, {8*768}
            s_add_u32 s33, s33, {CSP_OFF}
            s_add_u32 s34, s33, {4*768}
            v_lshl_add_u32 v{U+1}, s20, 6, v207
            v_cmp_gt_u32 vcc, 192, v{U+1}
            v_lshlrev_b32 v{U+1}, 2, v{U+1}
            v_mov_b32 v{U+2}, 0x40000000
            v_add_u32 v{VCR}, {CSB}, v{U+1}
            v_mov_b32 v{U+3}, {CSB+3072}
            v_cndmask_b32 v{U+1}, v{U+2}, v{U+1}, vcc
            v_cndmask_b32 v{VCR}, v{U+3}, v{VCR}, vcc"""]
            for j in range(NX): ex.append(f"buffer_load_dwordx2 {vr(WL+4*j,2)}, v{U}, s[64:67], 0 offen offset:{256*j} sc1")
            for j in range(8): ex2.append(f"buffer_load_dword v{WL+8+j}, v{U+1}, s[64:67], s{33+(j>>2)} offen offset:{768*(j&3)} sc1")
            log+=['q']*(NX+8)
        if st==19:
            ex=[f"v_add_f32 v{WL+8+j}, v{WL+8+j}, v{WL+12+j}" for j in range(4)]+[f"v_add_f32 v{WL+8+j}, v{WL+8+j}, v{WL+10+j}" for j in range(2)]
            ex=["\n".join(ex+[f"v_add_f32 v{WL+8}, v{WL+8}, v{WL+9}",f"ds_write_b32 v{VCR}, v{WL+8}"])]
        if st==4: log+=[f"x{st+4}"]*len(dx)+['s']+[f"w{st+4}"]*len(dw); continue_log=0
        elif st==5: log+=[f"x{st+4}"]*len(dx)+['s']+[f"w{st+4}"]*len(dw)
        else: log+= [f"x{st+4}"]*len(dx)+[f"w{st+4}"]*len(dw)
        if st==0:
            for x in reads(FA,st,0)+dx: A(x)
        else:
            for x in half(mf(FB),reads(FA,st,0), ex+dx): A(x)
        A("s_waitcnt lgkmcnt(0)")
        for x in half(mf(FA),reads(FB,st,1), ex2+dw): A(x)
    A("s_waitcnt lgkmcnt(0)")
    for x in mf(FB): A(x)
    if not SS: stamp(A,3)
    A(f"""v_and_b32 v{T}, 31, v207
    v_lshrrev_b32 v{T+1}, 5, v207
    v_lshlrev_b32 v{T+2}, 4, v{T+1}
    s_mul_i32 s26, s56, {3*128 if gu else 0}
    s_add_u32 s26, s26, {CSB}
    v_add_u32 v{T+2}, s26, v{T+2}
    v_add_u32 v{T}, s59, v{T}
    s_waitcnt lgkmcnt(0)
    s_barrier
    """)
    if not gu: A(f"v_mul_f32 v{WL+1}, s23, v{WL+1}")
    C=FA
    def norm(t0,t1):
        for t in range(t0,t1):
            for g in range(4): A(f"ds_read_b128 {vr(C+16*(t-t0)+4*g,4)}, v{T+2} offset:{(t*32+8*g)*4}")
        n=(t1-t0)*4
        for t in range(t0,t1):
            for g in range(4):
                n-=1
                A(f"s_waitcnt lgkmcnt({n})")
                for j in range(NX):
                    for p in range(2):
                        a=ACC+16*(NW_*j+t)+4*g+2*p; c=C+16*(t-t0)+4*g+2*p
                        A(f"v_pk_fma_f32 {vr(a,2)}, {vr(c,2)}, {vr(WL+4*j,2)}, {vr(a,2)} op_sel_hi:[1,0,1]")
                    for p in range(2):
                        a=ACC+16*(NW_*j+t)+4*g+2*p
                        A(f"v_pk_mul_f32 {vr(a,2)}, {vr(a,2)}, {vr(WL+4*j,2)} op_sel:[0,1] op_sel_hi:[1,1]")
    norm(0,3)
    if not gu: norm(3,5)
    if not SS: stamp(A,4)
    if gu:
        c0=-2*math.sqrt(2/math.pi)*math.log2(math.e); c1=c0*0.044715
        A(f"""v_lshrrev_b32 v{T+3}, 4, v{T}
        v_mul_u32_u24 v{T+3}, {74*1024}, v{T+3}
        v_and_b32 v{T}, 15, v{T}
        v_lshl_add_u32 v{T}, v{T}, 4, v{T+3}
        v_lshl_add_u32 v{T}, v{T+1}, 8, v{T}
        s_lshl_b32 s26, s22, 5
        s_mul_i32 s3, s56, 1536
        s_add_u32 s26, s26, s3
        s_mov_b32 s33, {2*74*1024}
        v_add_u32 v{T}, s26, v{T}
        s_mov_b32 s34, {hx(c1)}
        s_mov_b32 s36, 1.0
        v_mov_b32 v{T+10}, {hx(c0)}""")
        for t in range(NT):
            a=ACC+16*t; E=FA+16*(t&1); O=E+8
            for p in range(4): A(f"v_pk_mul_f32 {vr(E+2*p,2)}, {vr(a+2*p,2)}, {vr(a+2*p,2)}")
            for p in range(4): A(f"v_pk_fma_f32 {vr(E+2*p,2)}, {vr(E+2*p,2)}, s[34:35], {vr(T+10,2)} op_sel_hi:[1,0,0]")
            for p in range(4): A(f"v_pk_mul_f32 {vr(E+2*p,2)}, {vr(E+2*p,2)}, {vr(a+2*p,2)}")
            for i in range(8): A(f"v_exp_f32 v{E+i}, v{E+i}")
            for p in range(4): A(f"v_pk_mul_f32 {vr(a+2*p,2)}, {vr(a+2*p,2)}, {vr(a+8+2*p,2)}")
            for p in range(4): A(f"v_pk_add_f32 {vr(E+2*p,2)}, {vr(E+2*p,2)}, s[36:37] op_sel_hi:[1,0]")
            for i in range(8): A(f"v_rcp_f32 v{E+i}, v{E+i}")
            A("s_nop 0")
            for p in range(4): A(f"v_pk_mul_f32 {vr(a+2*p,2)}, {vr(a+2*p,2)}, {vr(E+2*p,2)}")
            for p in range(4): A(f"v_cvt_pk_bf16_f32 v{O+p}, v{a+2*p}, v{a+2*p+1}")
            A(f"buffer_store_dwordx4 {vr(O,4)}, v{T}, s[4:7], {'s33' if t>=3 else 0} offen offset:{512*(t%3)}")
    else:
        A(f"""v_mul_u32_u24 v{T}, 48, v{T}
        v_lshl_add_u32 v{T+1}, v{T+1}, 2, s27
        s_mov_b32 s26, {QKV_PLANE}
        v_mul_lo_u32 v{T+1}, v{T+1}, s26
        v_add_u32 v{T}, v{T}, v{T+1}
        s_mov_b32 s33, 0""")
        for hd in range(4):
            O=FA+12*hd
            for p in range(10): A(f"v_cvt_pk_bf16_f32 v{O+p}, v{ACC+20*hd+2*p}, v{ACC+20*hd+2*p+1}")
            A(f"v_mov_b32 v{O+10}, s29\nv_mov_b32 v{O+11}, s29")
            for p in range(3): A(f"buffer_store_dwordx4 {vr(O+4*p,4)}, v{T}, s[4:7], s33 offen offset:{16*p}")
            A(f"s_add_u32 s33, s33, {QKV_PLANE}")
    stamp_out(A,0,207,T+12)
    A("s_endpgm")
import struct
def hx(f): return "0x%08x"%struct.unpack('<I',struct.pack('<f',f))[0]
def gen(A):
    head(A,"k1_kernel")
    A(f"""
    s_cmp_ge_u32 s2, 256
    s_cbranch_scc1 K1_exit
    """); stamp(A,0); A(f"""
    s_load_dwordx4 s[40:43], s[0:1], 0
    s_load_dwordx4 s[44:47], s[0:1], 32
    s_load_dwordx4 s[72:75], s[0:1], 64
    v_lshrrev_b32 v1, 6, v0
    v_and_b32 v207, 63, v0
    s_and_b32 s3, s2, 7
    v_readfirstlane_b32 s20, v1
    s_lshr_b32 s4, s2, 3
    s_and_b32 s5, s3, 1
    s_lshr_b32 s6, s3, 1
    s_and_b32 s7, s4, 3
    s_lshl_b32 s5, s5, 2
    s_add_u32 s5, s5, s7
    s_lshr_b32 s4, s4, 2
    s_lshl_b32 s21, s5, 8
    s_lshl_b32 s7, s20, 5
    s_add_u32 s21, s21, s7
    v_lshrrev_b32 v{T}, 3, v207
    v_add_u32 v{T}, s21, v{T}
    v_mul_u32_u24 v{T}, 1280, v{T}
    v_lshrrev_b32 v{T+1}, 4, v207
    v_xor_b32 v{T+1}, v{T+1}, v207
    v_and_b32 v{T+1}, 7, v{T+1}
    v_lshl_add_u32 v{VX}, v{T+1}, 4, v{T}
    v_xor_b32 v{VX+1}, 64, v{VX}
    v_add_u32 v{VX+1}, {8*1280}, v{VX+1}
    v_add_u32 v{VX+2}, {16*1280}, v{VX}
    v_add_u32 v{VX+3}, {16*1280}, v{VX+1}
    v_and_b32 v{T}, 31, v207
    v_lshrrev_b32 v{T+1}, 5, v207
    v_bfe_u32 v{T+2}, v207, 1, 3
    v_xor_b32 v{T+1}, v{T+1}, v{T+2}
    v_lshlrev_b32 v{T}, 7, v{T}
    v_lshl_add_u32 v{T}, v{T+1}, 4, v{T}
    s_mul_i32 s7, s20, {XW}
    v_add_u32 v{VXR}, s7, v{T}
    v_xor_b32 v{VXR+1}, 32, v{VXR}
    v_xor_b32 v{VXR+2}, 64, v{VXR}
    v_xor_b32 v{VXR+3}, 96, v{VXR}
    s_lshl_b32 s54, s5, 8
    s_lshl_b32 s7, s4, 5
    s_add_u32 s54, s54, s7
    s_and_b32 s55, s5, 3
    s_mul_i32 s55, s55, 160
    s_mov_b32 s50, s4
    s_mov_b32 s51, s6
    s_mov_b32 s57, s5
    s_lshl_b32 s7, s6, 3
    s_add_u32 s7, s7, s4
    s_mov_b32 s32, 0xffff0000
    s_waitcnt lgkmcnt(0)
    s_mov_b32 s48, s74
    s_mov_b32 s49, s75
    """)
    srd(A,68,72,256); srd(A,64,48,CSP_OFF+30*8*768,ST_OFF)
    A("s_lshl_b32 s72, s57, 5\ns_add_u32 s72, s72, s7\ns_lshl_b32 s73, s72, 3\ns_add_u32 s73, s73, s20")
    srd(A,8,40,2621440)
    A(f"""s_cmp_lt_u32 s50, 3
    s_cbranch_scc0 K1_gu
    s_mul_i32 s51, s51, 3
    s_add_u32 s51, s51, s50
    s_mul_i32 s22, s51, 160
    s_mov_b32 s58, s51
    s_mov_b32 s59, s21
    s_lshl_b32 s27, s51, 3
    s_cmp_lt_u32 s51, 4
    s_cselect_b32 s23, {hx(20**-0.5*math.log2(math.e))}, 1.0
    """)
    srd(A,12,42,640*3840); srd(A,16,42,640*3840-160,160); srd(A,4,48,96*QKV_PLANE)
    variant(A,5,False)
    A(f"""K1_gu:
    s_sub_u32 s50, s50, 3
    s_mul_i32 s52, s51, 5
    s_lshl_b32 s53, s51, 2
    s_add_u32 s53, s53, 2
    s_cmp_lt_u32 s51, 2
    s_cselect_b32 s52, s52, s53
    s_cselect_b32 s53, 5, 4
    s_cmp_ge_u32 s50, s53
    s_cbranch_scc1 K1_pack
    s_add_u32 s52, s52, s50
    s_mul_i32 s22, s52, 96
    s_add_u32 s58, s52, 12
    s_and_b32 s3, s20, 3
    s_lshl_b32 s59, s3, 6
    s_lshl_b32 s26, s57, 8
    s_add_u32 s59, s59, s26
    s_lshl_b32 s3, s3, 1
    s_sub_i32 s3, s3, s20
    s_mul_i32 s3, s3, {XW}
    v_add_u32 v{VXR}, s3, v{VXR}
    v_add_u32 v{VXR+1}, s3, v{VXR+1}
    v_add_u32 v{VXR+2}, s3, v{VXR+2}
    v_add_u32 v{VXR+3}, s3, v{VXR+3}
    """)
    srd(A,12,44,640*3456); srd(A,16,46,640*3456); srd(A,4,48,HO_BYTES,HO_OFF)
    variant(A,6,True)
    pack(A)
    A("K1_exit:\ns_endpgm")

def pack(A):
    A("K1_pack:"); rowload(A); A("s_waitcnt vmcnt(0)"); rowstat(A); nonce_get(A,'P',U); A("s_waitcnt vmcnt(0)\ns_barrier"); flagset(A,'P')
    A(f"""
    s_load_dwordx2 s[42:43], s[0:1], 16
    s_load_dwordx2 s[44:45], s[0:1], 48
    s_sub_u32 s51, s51, 2
    s_lshl_b32 s51, s51, 3
    s_add_u32 s26, s51, s5
    s_mul_i32 s24, s20, 5120
    v_lshl_add_u32 v{T}, v207, 4, s24
    v_lshrrev_b32 v{T+1}, 4, v207
    v_lshlrev_b32 v{T+1}, 3, v{T+1}
    v_bfe_u32 v{T+2}, v207, 2, 2
    v_add_u32 v{T+1}, v{T+1}, v{T+2}
    v_mul_u32_u24 v{T+1}, 1280, v{T+1}
    v_and_b32 v{T+2}, 3, v207
    v_lshl_add_u32 v{T+1}, v{T+2}, 3, v{T+1}
    s_mul_i32 s3, s20, 160
    v_add_u32 v{T+1}, s3, v{T+1}
    s_mul_i32 s3, s20, {74*5120}
    v_lshl_add_u32 v{T+2}, v207, 4, s3
    v_add_u32 v{T+3}, 4096, v{T}
    v_add_u32 v{T+4}, 4096, v{T+2}
    s_waitcnt lgkmcnt(0)""")
    srd(A,4,48,WP_BYTES,WP_OFF)
    A(f"""K1_pl:
    s_cmp_ge_u32 s26, 54
    s_cselect_b32 s12, s42, s44
    s_cselect_b32 s13, s43, s45
    s_mov_b32 s14, {1728*1280}
    s_cselect_b32 s14, {640*1280}, s14
    s_mov_b32 s15, 0x20000
    s_cselect_b32 s3, 54, 0
    s_sub_u32 s3, s26, s3
    s_mul_i32 s31, s3, {32*1280}
    s_mov_b32 m0, s24
    s_mul_i32 s30, s26, 5120""")
    for j in range(4): A(f"buffer_load_dwordx4 v{T}, s[12:15], s31 offen offset:{1024*j} lds")
    A(f"s_add_u32 m0, s24, 4096\ns_nop 0\nbuffer_load_dwordx4 v{T+3}, s[12:15], s31 offen lds\ns_waitcnt vmcnt(0)\ns_barrier")
    for t in range(5):
        for e in range(2): A(f"ds_read_b64_tr_b16 {vr(4*t+2*e,2)}, v{T+1} offset:{e*4*1280+t*32}")
    A("s_waitcnt lgkmcnt(0)\ns_barrier")
    for t in range(4): A(f"buffer_store_dwordx4 {vr(4*t,4)}, v{T+2}, s[4:7], s30 offen offset:{1024*t}")
    A(f"buffer_store_dwordx4 {vr(16,4)}, v{T+4}, s[4:7], s30 offen")
    A("s_add_u32 s26, s26, 16\ns_cmp_lt_u32 s26, 74\ns_cbranch_scc1 K1_pl")

def rowload(A):
    A(f"""s_mul_i32 s26, s73, 1280
    v_mul_u32_u24 v{XS+5}, 20, v207
    buffer_load_dwordx4 {vr(XS,4)}, v{XS+5}, s[8:11], s26 offen
    buffer_load_dword v{XS+4}, v{XS+5}, s[8:11], s26 offen offset:16""")
def rowstat(A):
    S=XS+6; Q=XS+7
    for i in range(5):
        A(f"v_lshlrev_b32 v{U}, 16, v{XS+i}\nv_and_b32 v{U+1}, s32, v{XS+i}")
        if i==0: A(f"v_add_f32 v{S}, v{U}, v{U+1}\nv_mul_f32 v{Q}, v{U}, v{U}\nv_fmac_f32 v{Q}, v{U+1}, v{U+1}")
        else: A(f"v_add_f32 v{S}, v{S}, v{U}\nv_fmac_f32 v{Q}, v{U}, v{U}\nv_add_f32 v{S}, v{S}, v{U+1}\nv_fmac_f32 v{Q}, v{U+1}, v{U+1}")
    for d in ["row_shr:1","row_shr:2","row_shr:4","row_shr:8","row_bcast:15 row_mask:0xa","row_bcast:31 row_mask:0xc"]:
        bc = " bound_ctrl:0" if "shr" in d else ""
        A(f"s_nop 1\nv_add_f32_dpp v{S}, v{S}, v{S} {d}{bc}\nv_add_f32_dpp v{Q}, v{Q}, v{Q} {d}{bc}")
    A(f"""v_mul_f32 v{S}, {hx(-1/640)}, v{S}
    v_mul_f32 v{Q}, {hx(1/640)}, v{Q}
    v_fma_f32 v{Q}, -v{S}, v{S}, v{Q}
    v_max_f32 v{Q}, 0, v{Q}
    v_add_f32 v{Q}, {hx(1e-5)}, v{Q}
    v_rsq_f32 v{Q}, v{Q}
    v_cmp_eq_u32 vcc, 63, v207
    v_mov_b32 v{U}, 0x40000000
    s_lshl_b32 s26, s73, 3
    v_cndmask_b32 v{U}, v{U}, 0, vcc
    buffer_store_dwordx2 {vr(S,2)}, v{U}, s[64:67], s26 offen sc1""")
def flagset(A,P): flag_put(A,U,207,72,FL_OFF)
def flagpoll(A,P):
    A(f"""s_cmp_lg_u32 s20, 0
    s_cbranch_scc1 FP{P}_done
    v_and_b32 v{U}, 7, v207
    s_and_b32 s26, s72, 31
    v_lshl_add_u32 v{U}, v{U}, 5, s26
    s_and_b32 s26, s72, 0xe0
    v_add_u32 v{U+1}, s26, v207
    v_cmp_gt_u32 vcc, 32, v207
    s_nop 1
    v_cndmask_b32 v{U}, v{U}, v{U+1}, vcc""")
    flag_wait(A,P,U,FL_OFF)
```

```python
from common import *
S=0; KF=144; O=198; QF=214; T=220
K2_VG=240; K2_LDS=49152
def gen(A):
    head(A,"k2_kernel")
    A(f"""
    s_cmp_ge_u32 s2, 256
    s_cbranch_scc1 K2_exit
    """); stamp(A,0); A(f"""
    s_load_dwordx2 s[48:49], s[0:1], 72
    v_lshrrev_b32 v1, 6, v0
    v_and_b32 v239, 63, v0
    s_and_b32 s3, s2, 7
    v_readfirstlane_b32 s20, v1
    s_lshr_b32 s4, s2, 3
    s_and_b32 s5, s4, 3
    s_lshl_b32 s3, s3, 2
    s_add_u32 s21, s3, s5
    s_lshr_b32 s22, s4, 2
    s_mul_i32 s23, s21, {QKV_PLANE}
    s_lshl_b32 s24, s22, 8
    s_lshl_b32 s25, s20, 5
    s_add_u32 s26, s24, s25
    s_sub_u32 s27, s24, 256
    s_mul_i32 s27, s27, 48
    s_mul_i32 s28, s20, 3072
    s_add_u32 s27, s27, s28
    s_cmp_lt_i32 s27, 0
    s_cselect_b32 s27, 0x40000000, s27
    v_lshl_add_u32 v{T}, v239, 4, s27
    v_and_b32 v{T+1}, 31, v239
    v_lshrrev_b32 v{T+2}, 5, v239
    v_add_u32 v{T+3}, s26, v{T+1}
    v_mul_u32_u24 v{T+4}, 48, v{T+3}
    v_lshlrev_b32 v{T+5}, 30, v{T+2}
    v_add3_u32 v{T+5}, v{T+5}, v{T+4}, 32
    v_lshl_add_u32 v{T+4}, v{T+2}, 4, v{T+4}
    s_waitcnt lgkmcnt(0)
    s_add_u32 s48, s48, s23
    s_addc_u32 s49, s49, 0
    """)
    srd(A,8,48,QKV_PLANE); srd(A,12,48,QKV_PLANE,32*QKV_PLANE); srd(A,16,48,QKV_PLANE,64*QKV_PLANE)
    A("s_mov_b32 m0, s28\ns_nop 0")
    for j in range(3): A(f"buffer_load_dwordx4 v{T}, s[12:15], 0 offen offset:{1024*j} lds")
    A(f"buffer_load_dwordx4 {vr(QF,4)}, v{T+4}, s[8:11], 0 offen\nbuffer_load_dwordx2 {vr(QF+4,2)}, v{T+5}, s[8:11], 0 offen")
    A("s_add_u32 m0, s28, 24576\ns_nop 0")
    for j in range(3): A(f"buffer_load_dwordx4 v{T}, s[16:19], 0 offen offset:{1024*j} lds")
    A(f"s_sub_u32 s48, s48, s23\ns_subb_u32 s49, s49, 0")
    srd(A,4,48,HO_BYTES,HO_OFF)
    A(f"v_lshlrev_b32 v{T+6}, 2, v{T+2}\nv_sub_u32 v{T+6}, v{T+6}, v{T+1}\nv_mov_b32 v{T+7}, 0xf149f2ca")
    for r in range(16): A(f"v_cmp_lt_i32 vcc, {-(8*(r>>2)+(r&3))}, v{T+6}\ns_mov_b64 {sr(52+2*r,2)}, vcc")
    for r in range(16):
        A(f"v_cndmask_b32 v{S+r}, v{T+7}, 0, {sr(52+2*r,2)}\nv_cndmask_b32 v{S+128+r}, 0, v{T+7}, {sr(52+2*r,2)}")
    for r in range(16): A(f"v_mov_b32 v{O+r}, 0")
    A(f"""v_add_u32 v{T+8}, s25, v{T+1}
    v_mul_u32_u24 v{T+8}, 48, v{T+8}
    v_add_u32 v{T+9}, 32, v{T+8}
    v_lshl_add_u32 v{T+8}, v{T+2}, 4, v{T+8}
    v_bfe_u32 v{T+10}, v239, 2, 2
    v_lshl_add_u32 v{T+10}, v{T+2}, 2, v{T+10}
    v_add_u32 v{T+10}, s25, v{T+10}
    v_mul_u32_u24 v{T+10}, 48, v{T+10}
    v_bfe_u32 v{T+11}, v239, 4, 1
    v_and_b32 v{T+12}, 3, v239
    v_lshl_add_u32 v{T+11}, v{T+11}, 2, v{T+12}
    v_lshlrev_b32 v{T+11}, 2, v{T+11}
    s_and_b32 s33, s21, 1
    s_cmp_eq_u32 s33, 0
    s_mov_b32 s30, 0x55504231
    s_cselect_b32 s30, 0x55543120, s30
    v_lshrrev_b32 v{T+11}, v{T+11}, s30
    v_and_b32 v{T+11}, 15, v{T+11}
    v_lshl_add_u32 v{T+10}, v{T+11}, 3, v{T+10}
    v_add_u32 v{T+10}, 24576, v{T+10}
    v_lshrrev_b32 v{T+4}, 4, v{T+3}
    v_mul_u32_u24 v{T+4}, {74*1024}, v{T+4}
    v_and_b32 v{T+3}, 15, v{T+3}
    v_lshl_add_u32 v{T+4}, v{T+3}, 4, v{T+4}
    s_mul_i32 s34, s21, 5
    s_add_u32 s35, s34, s33
    s_lshl_b32 s35, s35, 7
    s_add_u32 s35, s35, {54*1024}
    v_lshl_add_u32 v{T+3}, v{T+2}, 8, v{T+4}
    v_add_u32 v{T+3}, s35, v{T+3}
    s_cmp_eq_u32 s33, 0
    s_cselect_b32 s35, 4, 0
    s_add_u32 s34, s34, s35
    s_lshr_b32 s34, s34, 1
    s_lshl_b32 s34, s34, 8
    s_lshl_b32 s35, s33, 3
    s_add_u32 s34, s34, s35
    s_add_u32 s34, s34, {54*1024}
    v_lshlrev_b32 v{T+5}, 30, v{T+2}
    v_add3_u32 v{T+5}, v{T+5}, v{T+4}, s34
    """); stamp(A,1); A(f"""
    s_waitcnt vmcnt(3)
    s_barrier
    """); stamp(A,2)
    if STAMP: A("s_waitcnt lgkmcnt(0)")
    for t in range(9): A(f"ds_read_b128 {vr(KF+6*t,4)}, v{T+8} offset:{t*1536}")
    order=[1,2,3,4,5,6,7,0,8]
    for t in range(5): A(f"ds_read_b64 {vr(KF+6*t+4,2)}, v{T+9} offset:{t*1536}")
    for t in range(9):
        out = 14-(t+1) + max(0,min(t,4))
        A(f"s_waitcnt lgkmcnt({out})")
        c = vr(S+16*t,16) if t in (0,8) else "0"
        A(f"v_mfma_f32_32x32x16_bf16 {vr(S+16*t,16)}, {vr(KF+6*t,4)}, {vr(QF,4)}, {c}")
        if t<4: A(f"ds_read_b64 {vr(KF+6*(t+5)+4,2)}, v{T+9} offset:{(t+5)*1536}")
    A("s_waitcnt lgkmcnt(0)")
    for t in range(9): A(f"v_mfma_f32_32x32x8_bf16 {vr(S+16*t,16)}, {vr(KF+6*t+4,2)}, {vr(QF+4,2)}, {vr(S+16*t,16)}")
    A("s_waitcnt vmcnt(0)\ns_barrier"); stamp(A,3)
    if STAMP: A("s_waitcnt lgkmcnt(0)")
    VF=KF; P=KF+32
    def vread(t):
        b=VF+8*(t%4)
        return [f"ds_read_b64_tr_b16 {vr(b+4*u+2*z,2)}, v{T+10} offset:{t*1536+(16*u+8*z)*48}" for u in range(2) for z in range(2)]
    for t in range(3):
        for x in vread(t): A(x)
    A("s_cmp_lg_u32 s22, 0\ns_cbranch_scc1 K2_nofix\ns_nop 7\ns_nop 7\ns_sub_u32 s31, 8, s20")
    for t in range(8):
        A(f"s_cmp_le_u32 s31, {t}\ns_cbranch_scc1 K2_nofix")
        for r in range(16): A(f"v_mov_b32 v{S+16*t+r}, v{T+7}")
    A("K2_nofix:")
    M=T+12
    for t in range(9):
        for p in range(8):
            m=M+(p&3); a=S+16*t+2*p
            if t==0 and p<4: A(f"v_max_f32 v{m}, v{a}, v{a+1}")
            else: A(f"v_max3_f32 v{m}, v{a}, v{a+1}, v{m}")
    A(f"""v_max3_f32 v{M}, v{M}, v{M+1}, v{M+2}
    v_max_f32 v{M}, v{M}, v{M+3}
    v_mov_b32 v{M+1}, v{M}
    s_nop 1
    v_permlane32_swap_b32 v{M}, v{M+1}
    s_nop 1
    v_max_f32 v{M}, v{M}, v{M+1}""")
    for t in range(9):
        a=S+16*t; Pb=P+8*(t&1)
        for p in range(8): A(f"v_pk_add_f32 {vr(a+2*p,2)}, {vr(a+2*p,2)}, {vr(M,2)} op_sel_hi:[1,0] neg_lo:[0,1] neg_hi:[0,1]")
        for i in range(16): A(f"v_exp_f32 v{a+i}, v{a+i}")
        if t+3<9:
            for x in vread(t+3): A(x)
        else: A("s_nop 0")
        for p in range(8): A(f"v_cvt_pk_bf16_f32 v{Pb+p}, v{a+2*p}, v{a+2*p+1}")
        A(f"s_waitcnt lgkmcnt({4*min(3,8-t)})\ns_nop 0")
        b=VF+8*(t%4)
        for u in range(2): A(f"v_mfma_f32_32x32x16_bf16 {vr(O,16)}, {vr(b+4*u,4)}, {vr(Pb+4*u,4)}, {vr(O,16)}")
    A(f"s_nop 7\ns_nop 4\nv_rcp_f32 v{M}, v{O+12}\ns_nop 0")
    for p in range(6): A(f"v_pk_mul_f32 {vr(O+2*p,2)}, {vr(O+2*p,2)}, {vr(M,2)} op_sel_hi:[1,0]")
    for p in range(6): A(f"v_cvt_pk_bf16_f32 v{S+p}, v{O+2*p}, v{O+2*p+1}")
    A(f"buffer_store_dwordx4 {vr(S,4)}, v{T+3}, s[4:7], 0 offen\nbuffer_store_dwordx2 {vr(S+4,2)}, v{T+5}, s[4:7], 0 offen")
    stamp_out(A,1,239,T+14)
    A("K2_exit:\ns_endpgm")
```

```python
from common import *
ACC=0; F=80; XR=224; VA=234; VW=238; T=240; LN=251
K3_VG=252; K3_LDS=81920; NSET=4
def gen(A):
    head(A,"k3_kernel")
    A(f"""
    s_cmp_ge_u32 s2, 256
    s_cbranch_scc1 K3_exit
    """); stamp(A,0); A(f"""
    s_load_dwordx2 s[40:41], s[0:1], 0
    s_load_dwordx2 s[46:47], s[0:1], 56
    s_load_dwordx2 s[48:49], s[0:1], 72
    v_lshrrev_b32 v1, 6, v0
    v_and_b32 v{LN}, 63, v0
    s_and_b32 s3, s2, 7
    v_readfirstlane_b32 s20, v1
    s_lshr_b32 s4, s2, 3
    s_lshr_b32 s5, s3, 1
    s_lshl_b32 s5, s5, 3
    s_and_b32 s6, s4, 7
    s_add_u32 s5, s5, s6
    s_lshl_b32 s21, s5, 6
    s_and_b32 s3, s3, 1
    s_lshl_b32 s3, s3, 2
    s_lshr_b32 s4, s4, 3
    s_add_u32 s3, s3, s4
    s_mul_i32 s22, s3, 160
    s_mul_i32 s26, s20, 19
    s_cmp_eq_u32 s20, 3
    s_cselect_b32 s26, 56, s26
    s_mul_i32 s5, s5, {4*74*1024}
    s_mul_i32 s3, s3, {74*5120}
    v_lshl_add_u32 v{VA}, v{LN}, 4, s5
    v_add_u32 v{VA+1}, {74*1024}, v{VA}
    v_add_u32 v{VA+2}, {2*74*1024}, v{VA}
    v_add_u32 v{VA+3}, {3*74*1024}, v{VA}
    v_lshl_add_u32 v{VW}, v{LN}, 4, s3
    v_add_u32 v{VW+1}, 4096, v{VW}
    s_lshl_b32 s30, s26, 10
    s_mul_i32 s31, s26, 5120
    v_and_b32 v{T+5}, 15, v{LN}
    v_lshrrev_b32 v{T}, 4, v{LN}
    s_lshl_b32 s3, s20, 4
    s_add_u32 s3, s3, s21
    v_add_u32 v{T+5}, s3, v{T+5}
    v_mul_u32_u24 v{T+5}, 1280, v{T+5}
    v_lshl_add_u32 v{T+5}, v{T}, 3, v{T+5}
    v_add_u32 v{T+8}, s22, v{T+5}
    s_waitcnt lgkmcnt(0)
    """)
    srd(A,4,40,2621440); srd(A,8,48,HO_BYTES,HO_OFF); srd(A,12,48,WP_BYTES,WP_OFF); srd(A,16,46,2621440)
    def ld(i):
        b=F+36*(i%NSET)
        L=[f"buffer_load_dwordx4 {vr(b+4*j,4)}, v{VA+j}, s[8:11], s30 offen" for j in range(4)]
        L+=[f"buffer_load_dwordx4 {vr(b+16+4*t,4)}, v{VW+(t>>2)}, s[12:15], s31 offen offset:{(t&3)*1024}" for t in range(5)]
        L[-1]+="\ns_add_u32 s30, s30, 1024\ns_add_u32 s31, s31, 5120"
        return L
    def mf(i):
        b=F+36*(i%NSET)
        return [f"v_mfma_f32_16x16x32_bf16 {vr(ACC+4*(5*j+t),4)}, {vr(b+16+4*t,4)}, {vr(b+4*j,4)}, {vr(ACC+4*(5*j+t),4) if i else 0}" for t in range(5) for j in range(4)]
    for i in range(NSET-1):
        for x in ld(i): A(x)
    for t in range(5): A(f"buffer_load_dwordx2 {vr(XR+2*t,2)}, v{T+8}, s[4:7], 0 offen offset:{32*t}")
    stamp(A,1)
    for i in range(19):
        nxt=i+NSET-1
        if nxt==18: A("s_cmp_ge_u32 s20, 2\ns_cselect_b32 s10, 0, s10\ns_cselect_b32 s14, 0, s14")
        inflight=9*(min(19,i+NSET-1)-1-i)+(5 if i<NSET-1 else 0)
        A(f"s_waitcnt vmcnt({inflight})")
        if i==0: stamp(A,2)
        for x in interleave(mf(i), ld(nxt) if nxt<19 else []): A(x)
    stamp(A,3)
    A(f"""s_mul_i32 s3, s20, 20480
    v_lshl_add_u32 v{T}, v{LN}, 4, s3
    s_mul_i32 s3, s20, 5120
    v_lshl_add_u32 v{T+1}, v{LN}, 4, s3
    v_add_u32 v{T+2}, 40960, v{T+1}
    s_nop 4""")
    for i in range(20): A(f"ds_write_b128 v{T}, {vr(ACC+4*i,4)} offset:{i*1024}")
    stamp(A,4); A("s_waitcnt lgkmcnt(0)\ns_barrier")
    def rr(t):
        for w in range(4): A(f"ds_read_b128 {vr(16*t+4*w,4)}, v{T+1+(w>>1)} offset:{(w&1)*20480+t*1024}")
    rr(0); rr(1); rr(2)
    for t in range(5):
        b=16*t
        A(f"s_waitcnt lgkmcnt({[8,8,8,4,0][t]})")
        if t<2: rr(t+3)
        A(f"""v_lshlrev_b32 v{F}, 16, v{XR+2*t}
        v_and_b32 v{F+1}, 0xffff0000, v{XR+2*t}
        v_lshlrev_b32 v{F+2}, 16, v{XR+2*t+1}
        v_and_b32 v{F+3}, 0xffff0000, v{XR+2*t+1}""")
        for p in range(2):
            A(f"""v_pk_add_f32 {vr(b+2*p,2)}, {vr(b+2*p,2)}, {vr(b+4+2*p,2)}
            v_pk_add_f32 {vr(b+8+2*p,2)}, {vr(b+8+2*p,2)}, {vr(b+12+2*p,2)}
            v_pk_add_f32 {vr(b+2*p,2)}, {vr(b+2*p,2)}, {vr(F+2*p,2)}
            v_pk_add_f32 {vr(b+2*p,2)}, {vr(b+2*p,2)}, {vr(b+8+2*p,2)}""")
        A(f"v_cvt_pk_bf16_f32 v{b+4}, v{b}, v{b+1}\nv_cvt_pk_bf16_f32 v{b+5}, v{b+2}, v{b+3}")
        A(f"buffer_store_dwordx2 {vr(b+4,2)}, v{T+8}, s[16:19], 0 offen offset:{32*t}")
    stamp_out(A,2,LN,T+9)
    A("K3_exit:\ns_endpgm")
```

```python
class Asm:
    def __init__(s): s.L=[]
    def __call__(s, t):
        for l in t.strip('\n').split('\n'): s.L.append('  '+l.strip() if not l.strip().endswith(':') else l.strip())
    def txt(s): return '\n'.join(s.L)+'\n'
def vr(a,n): return f"v[{a}:{a+n-1}]" if n>1 else f"v{a}"
def sr(a,n): return f"s[{a}:{a+n-1}]" if n>1 else f"s{a}"
def srd(A, d, base, nbytes, off=0):
    if off:
        A(f"s_add_u32 s{d}, s{base}, {off}\ns_addc_u32 s{d+1}, s{base+1}, 0")
    else:
        A(f"s_mov_b32 s{d}, s{base}\ns_mov_b32 s{d+1}, s{base+1}")
    A(f"s_mov_b32 s{d+2}, {nbytes}\ns_mov_b32 s{d+3}, 0x20000")
def interleave(main, fill):
    out=[]; n=len(main); m=len(fill); k=0
    for i,x in enumerate(main):
        out.append(x)
        tgt=(m*(i+1)+n-1)//n
        while k<tgt: out.append(fill[k]); k+=1
    return out
import os
STAMP=int(os.environ.get('STAMP','0'))
def stamp(A, i):
    if STAMP: A(f"{os.environ.get('CLK','s_memrealtime')} s[{84+2*i}:{85+2*i}]")
_sc=[0]
def stamp_out(A, kid, ln, tv):
    if not STAMP: return
    _sc[0]+=1
    stamp(A,5)
    A(f"s_load_dwordx2 s[76:77], s[0:1], 72\ns_waitcnt lgkmcnt(0)\ns_cmp_lg_u32 s20, {STAMP-1}\ns_cbranch_scc1 ST_{_sc[0]}")
    A(f"s_add_u32 s76, s76, 0x2000000\ns_addc_u32 s77, s77, 0\ns_mov_b32 s78, 0x100000\ns_mov_b32 s79, 0x20000")
    for i in range(6): A(f"v_writelane_b32 v{tv}, s{84+2*i}, {i}")
    A(f"s_lshl_b32 s75, s2, 5\ns_add_u32 s75, s75, {kid*8192}\nv_lshl_add_u32 v{tv+1}, v{ln}, 2, s75\ns_mov_b64 exec, 63\nbuffer_store_dword v{tv}, v{tv+1}, s[76:79], 0 offen\nST_{_sc[0]}:")
ST_OFF=0x1800000; FL_OFF=16384; CSP_OFF=16384+3*32768; WP_OFF=0x1400000; WP_BYTES=8*74*5120; QKV_PLANE=98304; HO_OFF=0x900000; HO_PITCH=4736; HO_BYTES=2048*4736
def desc(name, vg, sg=100):
    return f""".p2align 6
.amdhsa_kernel {name}
  .amdhsa_next_free_vgpr {vg}
  .amdhsa_next_free_sgpr {sg}
  .amdhsa_accum_offset {(vg+3)//4*4}
  .amdhsa_group_segment_fixed_size 0
  .amdhsa_kernarg_size 80
  .amdhsa_user_sgpr_count 2
  .amdhsa_user_sgpr_kernarg_segment_ptr 1
  .amdhsa_system_sgpr_workgroup_id_x 1
.end_amdhsa_kernel
"""
def head(A,name):
    A(f".globl {name}\n.p2align 8\n.type {name},@function\n{name}:")

EXP=os.environ.get('EXP','')

def nonce_put(A, t, dbg=68):
    A(f"""s_memrealtime s[80:81]
    s_or_b32 s26, s2, s20
    s_cmp_eq_u32 s26, 0
    s_cselect_b32 s26, 0, 0x40000000
    v_mov_b32 v{t+1}, 0
    s_waitcnt lgkmcnt(0)
    s_or_b32 s80, s80, 1
    v_mov_b32 v{t}, s80
    buffer_store_dword v{t}, v{t+1}, s[{dbg}:{dbg+3}], s26 offen sc1""")
def nonce_get(A, P, t, wave=0, dbg=68):
    if wave>=0: A(f"s_cmp_lg_u32 s20, {wave}\ns_cbranch_scc1 NG{P}_done")
    A(f"""v_mov_b32 v{t}, 0
    s_mov_b32 s26, 0x100000
    NG{P}_loop:
    buffer_load_dword v{t+1}, v{t}, s[{dbg}:{dbg+3}], 0 offen sc1
    s_sub_u32 s26, s26, 1
    s_cbranch_scc1 NG{P}_done
    s_waitcnt vmcnt(0)
    v_readfirstlane_b32 s82, v{t+1}
    s_cmp_eq_u32 s82, 0
    s_cbranch_scc1 NG{P}_loop
    NG{P}_done:""")
def flag_put(A, t, ln, sidx, off, wave=0, st=64):
    A(f"""v_cmp_eq_u32 vcc, 0, v{ln}
    v_mov_b32 v{t}, 0x40000000
    s_lshl_b32 s26, s{sidx}, 7
    s_add_u32 s26, s26, {off}
    s_cmp_eq_u32 s20, {wave}
    s_cselect_b32 s26, s26, 0x40000000
    v_mov_b32 v{t+1}, s82
    v_cndmask_b32 v{t}, v{t}, 0, vcc
    buffer_store_dword v{t+1}, v{t}, s[{st}:{st+3}], s26 offen sc1""")
def flag_wait(A, P, t, off, st=64):
    A(f"""v_lshlrev_b32 v{t}, 7, v{t}
    s_mov_b32 s26, 0x100000
    s_mov_b32 s83, {off}
    FP{P}_loop:
    buffer_load_dword v{t+1}, v{t}, s[{st}:{st+3}], s83 offen sc1
    s_sub_u32 s26, s26, 1
    s_cbranch_scc1 FP{P}_done
    s_waitcnt vmcnt(0)
    v_cmp_ne_u32 vcc, s82, v{t+1}
    s_cbranch_vccz FP{P}_done
    s_sleep 1
    s_branch FP{P}_loop
    FP{P}_done:""")
KNAME='parallel_sum__sliding_block__geglu_ffn__prompt_kernel'
```

```python
from common import *
import math
SM=' sc1'
NS=5; XW=3*4096; WB=8*XW; WS=12416; CSB=WB+NS*WS; K1_LDS=163840
ACC=0; FA=96; FB=124; CSR=152; VSUM=158; VSQ=159; VCS=160
VX=184; VW=165; VXR=188; VWR=168; VCR=169; T=170; U=192; PF=200; VS2=163; VQ2=164
XS=152; WL=208; END=228
K1_VG=252
def variant(A, NT, gu):
    P='G' if gu else 'Q'
    pitch=3456 if gu else 3840
    RD=NT*1024+128
    A(f"""
    s_mul_i32 s24, s20, {XW}
    s_mul_i32 s25, s20, {NT*128}
    s_add_u32 s25, s25, {WB}
    v_lshrrev_b32 v{T}, 3, v207
    v_bfe_u32 v{T+1}, v207, 1, 2
    v_and_b32 v{T+2}, 1, v207
    s_lshl_b32 s26, s20, 2
    v_add_u32 v{T+1}, s26, v{T+1}
    v_mul_u32_u24 v{T+1}, {pitch}, v{T+1}
    v_lshlrev_b32 v{T}, 5, v{T}
    v_lshl_add_u32 v{T}, v{T+2}, 4, v{T}
    s_lshl_b32 s26, s22, 1
    v_add3_u32 v{VW}, v{T}, v{T+1}, s26
    v_lshrrev_b32 v{T}, 5, v207
    v_bfe_u32 v{T+1}, v207, 4, 1
    v_and_b32 v{T+2}, 1, v207
    v_bfe_u32 v{T+3}, v207, 2, 2
    v_bfe_u32 v{T+4}, v207, 1, 1
    v_mul_u32_u24 v{T+5}, {RD}, v{T+1 if gu else T+2}
    v_lshl_add_u32 v{T+5}, v{T+2 if gu else T+1}, 4, v{T+5}
    v_lshl_add_u32 v{T+5}, v{T+3}, 5, v{T+5}
    v_lshl_add_u32 v{T+5}, v{T+4}, 3, v{T+5}
    v_mul_u32_u24 v{T+6}, {2*NT*128}, v{T}
    v_add_u32 v{VWR}, {WB}, v{T+5}
    v_add_u32 v{VWR}, v{T+6}, v{VWR}
    s_lshr_b32 s56, s20, 2
    s_mul_i32 s26, s56, {3*128 if gu else 0}
    v_add_u32 v{VWR}, s26, v{VWR}
    """)
    ehi = 0xffff if gu else 0xff
    def dmax(g):
        n=g>>1; j0=2*(g&1)
        return [f"s_add_u32 m0, s24, {(n%3)*4096+(j0+j)*1024}\ns_movk_i32 s30, {n*128}\nbuffer_load_dwordx4 v{VX+j0+j}, s[8:11], s30 offen lds" for j in range(2)]
    def dmaw(st):
        sl=st%NS
        return [f"s_add_u32 m0, s25, {sl*WS+R*RD}\ns_mov_b32 s31, {st*32*pitch}\ns_mov_b32 exec_hi, {ehi}\nbuffer_load_dwordx4 v{VW}, s[{12+4*R}:{15+4*R}], s31 offen lds\ns_mov_b32 exec_hi, -1" for R in range(2)]
    for d in dmaw(0)+dmax(0)+dmax(1): A(d)
    A('s_barrier')
    for d in dmaw(1): A(d)
    A0=A; A=Asm()
    nonce_put(A,T)
    rowload(A)
    NC=2*NT
    A(f"""v_and_b32 v{T}, 15, v207
    v_lshrrev_b32 v{T+1}, 4, v207
    s_and_b32 s3, s20, 3
    s_lshl_b32 s26, s3, 2
    s_mul_i32 s33, s57, 80
    s_add_u32 s26, s26, s33
    v_add_u32 v{T+2}, s26, v{T+1}
    v_mul_u32_u24 v{T+2}, {pitch}, v{T+2}
    v_lshl_add_u32 v{T+2}, v{T}, 4, v{T+2}
    s_lshl_b32 s26, s22, 1
    v_add_u32 v{T+2}, s26, v{T+2}
    v_cmp_gt_u32 vcc, {NC}, v{T}
    v_mov_b32 v{T+3}, 0x40000000
    s_cmp_eq_u32 s56, 0
    s_cselect_b32 s60, s12, s16
    s_cselect_b32 s61, s13, s17
    s_cselect_b32 s62, s14, s18
    s_mov_b32 s63, 0x20000
    v_cndmask_b32 v{T+2}, v{T+3}, v{T+2}, vcc""")
    for i in range(5): A(f"s_mov_b32 s26, {16*i*pitch}\nbuffer_load_dwordx4 {vr(WL+4*i,4)}, v{T+2}, s[60:63], s26 offen")
    A(f"""v_lshrrev_b32 v{T+2}, 1, v{T}
    v_and_b32 v{T}, 1, v{T}
    v_lshlrev_b32 v{T+2}, 7, v{T+2}
    v_lshl_add_u32 v{T+2}, v{T}, {4 if gu else 6}, v{T+2}
    v_lshrrev_b32 v{T}, 1, v{T+1}
    v_lshl_add_u32 v{T+2}, v{T}, 5, v{T+2}
    v_and_b32 v{T}, 1, v{T+1}
    v_lshl_add_u32 v{T+2}, v{T}, 3, v{T+2}
    s_lshl_b32 s26, s56, {6 if gu else 4}
    s_mul_i32 s3, s3, 768
    s_add_u32 s26, s26, s3
    s_add_u32 s26, s26, {CSB}
    v_add_u32 v{T+2}, s26, v{T+2}
    v_mov_b32 v{T+3}, {CSB+3072}
    v_cndmask_b32 v{VCR}, v{T+3}, v{T+2}, vcc
    s_mov_b32 s29, 0x3f803f80""")
    PL=A.L; A=A0
    NX=2 if gu else 1; NW_=3 if gu else 5
    def reads(F, st, ks):
        sl=st%NS; L=[]
        xs=[f"ds_read_b128 {vr(F+4*j,4)}, v{VXR+2*(st&1)+ks} offset:{((st>>1)%3)*4096+j*XW}" for j in range(NX)]
        for t in range(NW_):
            if t<NX: L.append(xs[t])
            for e in range(2):
                L.append(f"ds_read_b64_tr_b16 {vr(F+8+4*t+2*e,2)}, v{VWR} offset:{sl*WS+((4*ks+e)*NT+t)*128}")
        return L if 'noread' not in EXP else []
    def mf(F,z=False): return [f"v_mfma_f32_32x32x16_bf16 {vr(ACC+16*(NW_*j+t),16)}, {vr(F+8+4*t,4)}, {vr(F+4*j,4)}, {0 if z else vr(ACC+16*(NW_*j+t),16)}" for t in range(NW_) for j in range(NX)]
    def half(m, rd, extra):
        out=[]; per=(len(rd)+2)//3
        for i,x in enumerate(m):
            out.append(x)
            out+=rd[:per]; rd=rd[per:]
            if i>=2 and extra:
                n=(len(extra)+len(m)-1-i)//(len(m)-i); out+=extra[:n]; extra=extra[n:]
        return out+rd+extra
    SS=[int(x) for x in os.environ.get('SS','').split(',') if x]
    if 'skipdma' in EXP: dmax=lambda g: []; dmaw=lambda g: []
    if 'nomfma' in EXP: mf=lambda F,z=False: ["s_nop 0"]*(NX*NW_)
    log=['w0','w0','x0','x0','x1','x1','w1','w1']
    S0=6
    for st in range(20):
        need={f"w{st}",f"x{st&~1}",f"x{st|1}"}
        if st==S0: need.add('p')
        if st==19: need.add('q')
        if st==S0+3: need.add('n')
        if st==S0+5: need.add('s')
        last=max([i for i,x in enumerate(log) if x in need]+[-1])
        A(f"s_waitcnt vmcnt({min(63,len(log)-1-last)}) lgkmcnt(0)\ns_barrier")
        if st in SS: stamp(A,1+SS.index(st))
        dx=dmax(st+4) if st+4<20 else []; dw=dmaw(st+4) if st+4<20 else []
        ex=[]; ex2=[]
        if st==S0:
            B=Asm(); rowstat(B); ex=[l for l in B.L]
            for e in range(8):
                u=U+e
                for i in range(5):
                    r=WL+4*i+(e>>1); d=u if i==0 else T+(i&1)
                    ex.append(f"v_and_b32 v{d}, s32, v{r}" if e&1 else f"v_lshlrev_b32 v{d}, 16, v{r}")
                    if i: ex.append(f"v_add_f32 v{u}, v{u}, v{d}")
            ex.append("s_nop 1")
            ex+=[f"v_permlane32_swap_b32 v{U+i}, v{U+4+i}" for i in range(4)]+["s_nop 1"]
            ex+=[f"v_add_f32 v{U+i}, v{U+i}, v{U+4+i}" for i in range(4)]+["s_nop 1"]
            ex+=[f"v_permlane16_swap_b32 v{U+i}, v{U+2+i}" for i in range(2)]+["s_nop 1"]
            ex+=[f"v_add_f32 v{U+i}, v{U+i}, v{U+2+i}" for i in range(2)]
            ex.append(f"ds_write_b64 v{VCR}, {vr(U,2)}")
            n=(len(ex)+5)//6; parts=["\n".join(ex[i:i+n]) for i in range(0,len(ex),n)]
            ex=parts[:3]; ex2=parts[3:]
        if st==S0+1:
            ex=[f"""v_lshl_add_u32 v{U}, s20, 6, v207
            v_cmp_gt_u32 vcc, 192, v{U}
            v_lshlrev_b32 v{U}, 2, v{U}
            v_add_u32 v{U+1}, {CSB}, v{U}
            ds_read_b32 v{U+2}, v{U+1}
            ds_read_b32 v{U+3}, v{U+1} offset:768
            ds_read_b32 v{U+4}, v{U+1} offset:1536
            ds_read_b32 v{U+5}, v{U+1} offset:2304
            v_mov_b32 v{U+1}, 0x40000000
            s_lshl_b32 s26, s58, 3
            s_add_u32 s26, s26, s57
            s_mul_i32 s33, s26, 768
            s_add_u32 s33, s33, {CSP_OFF}
            v_cndmask_b32 v{U}, v{U+1}, v{U}, vcc"""]
            ex2=[f"""v_add_f32 v{U+2}, v{U+2}, v{U+3}
            v_add_f32 v{U+4}, v{U+4}, v{U+5}
            v_add_f32 v{U+2}, v{U+2}, v{U+4}
            buffer_store_dword v{U+2}, v{U}, s[64:67], s33 offen sc1"""]
        if st==S0+3:
            B=Asm(); B(f"v_readfirstlane_b32 s82, v{PF}\ns_cmp_lg_u32 s82, 0\ns_cbranch_scc1 NG{P}_done"); nonce_get(B,P,U,-1); ex=["\n".join(B.L)]
        if st==4:
            ex=[f"v_mov_b32 v{PF+1}, 0\nbuffer_load_dword v{PF}, v{PF+1}, s[68:71], 0 offen sc1"]; log+=['n']
        if st==S0+5:
            B=Asm(); flagset(B,P); ex=["\n".join(B.L)]; log+=['f']
        if st==15:
            B=Asm(); flagpoll(B,P); ex=["\n".join(B.L)]
        if st==16:
            ex=[f"""v_and_b32 v{U}, 31, v207
            v_add_u32 v{U}, s59, v{U}
            v_lshlrev_b32 v{U}, 3, v{U}
            s_mul_i32 s33, s58, {8*768}
            s_add_u32 s33, s33, {CSP_OFF}
            s_add_u32 s34, s33, {4*768}
            v_lshl_add_u32 v{U+1}, s20, 6, v207
            v_cmp_gt_u32 vcc, 192, v{U+1}
            v_lshlrev_b32 v{U+1}, 2, v{U+1}
            v_mov_b32 v{U+2}, 0x40000000
            v_add_u32 v{VCR}, {CSB}, v{U+1}
            v_mov_b32 v{U+3}, {CSB+3072}
            v_cndmask_b32 v{U+1}, v{U+2}, v{U+1}, vcc
            v_cndmask_b32 v{VCR}, v{U+3}, v{VCR}, vcc"""]
            for j in range(NX): ex.append(f"buffer_load_dwordx2 {vr(WL+4*j,2)}, v{U}, s[64:67], 0 offen offset:{256*j} sc1")
            for j in range(8): ex2.append(f"buffer_load_dword v{WL+8+j}, v{U+1}, s[64:67], s{33+(j>>2)} offen offset:{768*(j&3)} sc1")
            log+=['q']*(NX+8)
        if st==19:
            ex=[f"v_add_f32 v{WL+8+j}, v{WL+8+j}, v{WL+12+j}" for j in range(4)]+[f"v_add_f32 v{WL+8+j}, v{WL+8+j}, v{WL+10+j}" for j in range(2)]
            ex=["\n".join(ex+[f"v_add_f32 v{WL+8}, v{WL+8}, v{WL+9}",f"ds_write_b32 v{VCR}, v{WL+8}"])]
        if st==0:
            dx=dmax(2)+dmaw(2)+dmax(3)+dmaw(3); dw=dmax(4)+dmaw(4)
            log+=[f"{c}{k}" for k in (2,3,4) for c in "xxww"] if dx else []
        elif st==1:
            n=(len(PL)+3)//4; ex2=["\n".join(PL[i:i+n]) for i in range(0,len(PL),n)]
            log+=[f"x{st+4}"]*len(dx)+['p']*8+[f"w{st+4}"]*len(dw)
        elif st in (S0,S0+1): log+=[f"x{st+4}"]*len(dx)+['s']+[f"w{st+4}"]*len(dw)
        else: log+= [f"x{st+4}"]*len(dx)+[f"w{st+4}"]*len(dw)
        if st==0:
            for x in reads(FA,st,0)+dx: A(x)
        else:
            for x in half(mf(FB),reads(FA,st,0), ex+dx): A(x)
        A("s_waitcnt lgkmcnt(0)")
        for x in half(mf(FA,st==0),reads(FB,st,1), ex2+dw): A(x)
    A("s_waitcnt lgkmcnt(0)")
    for x in mf(FB): A(x)
    if not SS: stamp(A,1)
    A(f"""v_and_b32 v{T}, 31, v207
    v_lshrrev_b32 v{T+1}, 5, v207
    v_lshlrev_b32 v{T+2}, 4, v{T+1}
    s_mul_i32 s26, s56, {3*128 if gu else 0}
    s_add_u32 s26, s26, {CSB}
    v_add_u32 v{T+2}, s26, v{T+2}
    v_add_u32 v{T}, s59, v{T}
    s_waitcnt lgkmcnt(0)
    s_barrier
    """)
    if not gu: A(f"v_mul_f32 v{WL+1}, s23, v{WL+1}")
    C=FA
    def norm(t0,t1):
        for t in range(t0,t1):
            for g in range(4): A(f"ds_read_b128 {vr(C+16*(t-t0)+4*g,4)}, v{T+2} offset:{(t*32+8*g)*4}")
        n=(t1-t0)*4
        for t in range(t0,t1):
            for g in range(4):
                n-=1
                A(f"s_waitcnt lgkmcnt({n})")
                for j in range(NX):
                    for p in range(2):
                        a=ACC+16*(NW_*j+t)+4*g+2*p; c=C+16*(t-t0)+4*g+2*p
                        A(f"v_pk_fma_f32 {vr(a,2)}, {vr(c,2)}, {vr(WL+4*j,2)}, {vr(a,2)} op_sel_hi:[1,0,1]")
                    for p in range(2):
                        a=ACC+16*(NW_*j+t)+4*g+2*p
                        A(f"v_pk_mul_f32 {vr(a,2)}, {vr(a,2)}, {vr(WL+4*j,2)} op_sel:[0,1] op_sel_hi:[1,1]")
    norm(0,3)
    if not gu: norm(3,5)
    if gu:
        c0=-2*math.sqrt(2/math.pi)*math.log2(math.e); c1=c0*0.044715
        A(f"""v_lshrrev_b32 v{T+3}, 4, v{T}
        v_mul_u32_u24 v{T+3}, {74*1024}, v{T+3}
        v_and_b32 v{T}, 15, v{T}
        v_lshl_add_u32 v{T}, v{T}, 4, v{T+3}
        v_lshl_add_u32 v{T}, v{T+1}, 8, v{T}
        s_lshl_b32 s26, s22, 5
        s_mul_i32 s3, s56, 1536
        s_add_u32 s26, s26, s3
        s_mov_b32 s33, {2*74*1024}
        v_add_u32 v{T}, s26, v{T}
        s_mov_b32 s34, {hx(c1)}
        s_mov_b32 s36, 1.0
        v_mov_b32 v{T+10}, {hx(c0)}""")
        for t in range(NT):
            a=ACC+16*t; E=FA+16*(t&1); O=E+8
            for p in range(4): A(f"v_pk_mul_f32 {vr(E+2*p,2)}, {vr(a+2*p,2)}, {vr(a+2*p,2)}")
            for p in range(4): A(f"v_pk_fma_f32 {vr(E+2*p,2)}, {vr(E+2*p,2)}, s[34:35], {vr(T+10,2)} op_sel_hi:[1,0,0]")
            for p in range(4): A(f"v_pk_mul_f32 {vr(E+2*p,2)}, {vr(E+2*p,2)}, {vr(a+2*p,2)}")
            for i in range(8): A(f"v_exp_f32 v{E+i}, v{E+i}")
            for p in range(4): A(f"v_pk_mul_f32 {vr(a+2*p,2)}, {vr(a+2*p,2)}, {vr(a+8+2*p,2)}")
            for p in range(4): A(f"v_pk_add_f32 {vr(E+2*p,2)}, {vr(E+2*p,2)}, s[36:37] op_sel_hi:[1,0]")
            for i in range(8): A(f"v_rcp_f32 v{E+i}, v{E+i}")
            A("s_nop 0")
            for p in range(4): A(f"v_pk_mul_f32 {vr(a+2*p,2)}, {vr(a+2*p,2)}, {vr(E+2*p,2)}")
            for p in range(4): A(f"v_cvt_pk_bf16_f32 v{O+p}, v{a+2*p}, v{a+2*p+1}")
            A(f"buffer_store_dwordx4 {vr(O,4)}, v{T}, s[4:7], {'s33' if t>=3 else 0} offen offset:{512*(t%3)}{SM}")
    else:
        A(f"""v_and_b32 v{T}, 31, v207
        v_mul_u32_u24 v{T}, 48, v{T}
        s_mul_i32 s26, s20, 12288
        s_movk_i32 s33, 6144
        v_mad_u32_u24 v{T}, v{T+1}, s33, v{T}
        v_add_u32 v{T}, s26, v{T}
        v_lshl_add_u32 v{T+1}, v207, 4, s26
        s_mul_i32 s33, s27, {QKV_PLANE}
        s_mul_i32 s26, s59, 48
        s_add_u32 s33, s33, s26
        v_lshlrev_b32 v{T+3}, 4, v207
        v_add_u32 v{T+5}, {QKV_PLANE+512}, v{T+3}
        v_add_u32 v{T+4}, 1024, v{T+3}
        v_add_u32 v{T+6}, {QKV_PLANE-512}, v{T+3}
        v_cmp_gt_u32 vcc, 32, v207
        s_nop 1
        v_cndmask_b32 v{T+4}, v{T+6}, v{T+4}, vcc""")
        for hd in range(4):
            O=FA+12*hd
            for p in range(10): A(f"v_cvt_pk_bf16_f32 v{O+p}, v{ACC+20*hd+2*p}, v{ACC+20*hd+2*p+1}")
            A(f"v_mov_b32 v{O+10}, s29\nv_mov_b32 v{O+11}, s29")
            for p in range(3): A(f"ds_write_b128 v{T}, {vr(O+4*p,4)} offset:{hd*1536+16*p}")
        A("s_waitcnt lgkmcnt(0)")
        for i in range(12): A(f"ds_read_b128 {vr(4*i,4)}, v{T+1} offset:{1024*i}")
        for i in range(12):
            A(f"s_waitcnt lgkmcnt({11-i})\nbuffer_store_dwordx4 {vr(4*i,4)}, v{T+3+i%3}, s[4:7], s33 offen{SM}")
            if i%3==2: A(f"s_add_u32 s33, s33, {2*QKV_PLANE}")
    if not SS: stamp(A,2)
    A("s_branch PHB")
import struct
def hx(f): return "0x%08x"%struct.unpack('<I',struct.pack('<f',f))[0]
def gen(A):
    head(A,KNAME)
    A(f"""
    s_cmp_ge_u32 s2, 256
    s_cbranch_scc1 K1_exit
    """); stamp(A,0); A(f"""
    s_load_dwordx4 s[40:43], s[0:1], 0
    s_load_dwordx4 s[44:47], s[0:1], 32
    s_load_dwordx4 s[72:75], s[0:1], 64
    v_lshrrev_b32 v1, 6, v0
    v_and_b32 v207, 63, v0
    s_and_b32 s3, s2, 7
    v_readfirstlane_b32 s20, v1
    s_lshr_b32 s4, s2, 3
    s_and_b32 s5, s3, 1
    s_lshr_b32 s6, s3, 1
    s_and_b32 s7, s4, 3
    s_lshl_b32 s5, s5, 2
    s_add_u32 s5, s5, s7
    s_lshr_b32 s4, s4, 2
    s_lshl_b32 s21, s5, 8
    s_lshl_b32 s7, s20, 5
    s_add_u32 s21, s21, s7
    v_lshrrev_b32 v{T}, 3, v207
    v_add_u32 v{T}, s21, v{T}
    v_mul_u32_u24 v{T}, 1280, v{T}
    v_lshrrev_b32 v{T+1}, 4, v207
    v_xor_b32 v{T+1}, v{T+1}, v207
    v_and_b32 v{T+1}, 7, v{T+1}
    v_lshl_add_u32 v{VX}, v{T+1}, 4, v{T}
    v_xor_b32 v{VX+1}, 64, v{VX}
    v_add_u32 v{VX+1}, {8*1280}, v{VX+1}
    v_add_u32 v{VX+2}, {16*1280}, v{VX}
    v_add_u32 v{VX+3}, {16*1280}, v{VX+1}
    v_and_b32 v{T}, 31, v207
    v_lshrrev_b32 v{T+1}, 5, v207
    v_bfe_u32 v{T+2}, v207, 1, 3
    v_xor_b32 v{T+1}, v{T+1}, v{T+2}
    v_lshlrev_b32 v{T}, 7, v{T}
    v_lshl_add_u32 v{T}, v{T+1}, 4, v{T}
    s_mul_i32 s7, s20, {XW}
    v_add_u32 v{VXR}, s7, v{T}
    v_xor_b32 v{VXR+1}, 32, v{VXR}
    v_xor_b32 v{VXR+2}, 64, v{VXR}
    v_xor_b32 v{VXR+3}, 96, v{VXR}
    s_lshl_b32 s54, s5, 8
    s_lshl_b32 s7, s4, 5
    s_add_u32 s54, s54, s7
    s_and_b32 s55, s5, 3
    s_mul_i32 s55, s55, 160
    s_mov_b32 s50, s4
    s_mov_b32 s51, s6
    s_mov_b32 s57, s5
    s_lshl_b32 s7, s6, 3
    s_add_u32 s7, s7, s4
    s_mov_b32 s32, 0xffff0000
    s_waitcnt lgkmcnt(0)
    s_mov_b32 s48, s74
    s_mov_b32 s49, s75
    """)
    srd(A,68,72,256); srd(A,64,48,CSP_OFF+30*8*768,ST_OFF)
    A("s_lshl_b32 s72, s57, 5\ns_add_u32 s72, s72, s7\ns_lshl_b32 s73, s72, 3\ns_add_u32 s73, s73, s20")
    srd(A,8,40,2621440)
    A(f"""s_cmp_lt_u32 s50, 3
    s_cbranch_scc0 K1_gu
    s_mul_i32 s51, s51, 3
    s_add_u32 s51, s51, s50
    s_mul_i32 s22, s51, 160
    s_mov_b32 s58, s51
    s_mov_b32 s59, s21
    s_lshl_b32 s27, s51, 3
    s_cmp_lt_u32 s51, 4
    s_cselect_b32 s23, {hx(20**-0.5*math.log2(math.e))}, 1.0
    """)
    srd(A,12,42,640*3840); srd(A,16,42,640*3840-160,160); srd(A,4,48,96*QKV_PLANE)
    variant(A,5,False)
    A(f"""K1_gu:
    s_sub_u32 s50, s50, 3
    s_mul_i32 s52, s51, 5
    s_lshl_b32 s53, s51, 2
    s_add_u32 s53, s53, 2
    s_cmp_lt_u32 s51, 2
    s_cselect_b32 s52, s52, s53
    s_cselect_b32 s53, 5, 4
    s_cmp_ge_u32 s50, s53
    s_cbranch_scc1 K1_pack
    s_add_u32 s52, s52, s50
    s_mul_i32 s22, s52, 96
    s_add_u32 s58, s52, 12
    s_and_b32 s3, s20, 3
    s_lshl_b32 s59, s3, 6
    s_lshl_b32 s26, s57, 8
    s_add_u32 s59, s59, s26
    s_lshl_b32 s3, s3, 1
    s_sub_i32 s3, s3, s20
    s_mul_i32 s3, s3, {XW}
    v_add_u32 v{VXR}, s3, v{VXR}
    v_add_u32 v{VXR+1}, s3, v{VXR+1}
    v_add_u32 v{VXR+2}, s3, v{VXR+2}
    v_add_u32 v{VXR+3}, s3, v{VXR+3}
    """)
    srd(A,12,44,640*3456); srd(A,16,46,640*3456); srd(A,4,48,HO_BYTES,HO_OFF)
    variant(A,6,True)
    pack(A)
    import k23; k23.gen(A)
    A("K1_exit:\ns_endpgm")

def pack(A):
    A("K1_pack:")
    A(f"""
    s_load_dwordx2 s[42:43], s[0:1], 16
    s_load_dwordx2 s[44:45], s[0:1], 48
    s_sub_u32 s51, s51, 2
    s_lshl_b32 s51, s51, 3
    s_add_u32 s28, s51, s5
    s_mul_i32 s24, s20, 5120
    v_lshl_add_u32 v{T}, v207, 4, s24
    v_lshrrev_b32 v{T+1}, 4, v207
    v_lshlrev_b32 v{T+1}, 3, v{T+1}
    v_bfe_u32 v{T+2}, v207, 2, 2
    v_add_u32 v{T+1}, v{T+1}, v{T+2}
    v_mul_u32_u24 v{T+1}, 1280, v{T+1}
    v_and_b32 v{T+2}, 3, v207
    v_lshl_add_u32 v{T+1}, v{T+2}, 3, v{T+1}
    s_mul_i32 s3, s20, 160
    v_add_u32 v{T+1}, s3, v{T+1}
    s_mul_i32 s3, s20, {74*5120}
    v_lshl_add_u32 v{T+2}, v207, 4, s3
    v_add_u32 v{T+3}, 4096, v{T}
    v_add_u32 v{T+4}, 4096, v{T+2}
    s_waitcnt lgkmcnt(0)""")
    srd(A,4,48,WP_BYTES,WP_OFF)
    def issue(i):
        A(f"""s_add_u32 s27, s28, {16*i}
        s_cmp_ge_u32 s27, 54
        s_cselect_b32 s12, s42, s44
        s_cselect_b32 s13, s43, s45
        s_mov_b32 s14, {1728*1280}
        s_cselect_b32 s14, {640*1280}, s14
        s_mov_b32 s15, 0x20000
        s_cselect_b32 s3, 54, 0
        s_sub_u32 s3, s27, s3
        s_add_u32 m0, s24, {(i%3)*40960}
        s_mul_i32 s31, s3, {32*1280}""")
        for j in range(4): A(f"buffer_load_dwordx4 v{T}, s[12:15], s31 offen offset:{1024*j} lds")
        A(f"s_add_u32 m0, s24, {(i%3)*40960+4096}\ns_nop 0\nbuffer_load_dwordx4 v{T+3}, s[12:15], s31 offen lds")
    for i in range(3): issue(i)
    rowload(A); A("s_waitcnt vmcnt(0)"); rowstat(A); nonce_get(A,'P',U,-1); A("s_waitcnt vmcnt(0)\ns_barrier"); flagset(A,'P')
    A(f"v_add_u32 v{T+5}, {2*40960}, v{T+1}")
    for i in range(5):
        if i>=3: A(f"s_waitcnt vmcnt({15 if i==3 else 10})\ns_barrier")
        for t in range(5):
            for e in range(2): A(f"ds_read_b64_tr_b16 {vr(20*(i&1)+4*t+2*e,2)}, v{T+5 if i%3==2 else T+1} offset:{(i%3%2)*40960+e*4*1280+t*32}")
        A("s_waitcnt lgkmcnt(0)")
        if i<2: A("s_barrier"); issue(i+3)
        A(f"s_add_u32 s27, s28, {16*i}\ns_mul_i32 s30, s27, 5120\ns_cmp_lt_u32 s27, 74\ns_cselect_b32 s30, s30, 0x40000000")
        for t in range(4): A(f"buffer_store_dwordx4 {vr(20*(i&1)+4*t,4)}, v{T+2}, s[4:7], s30 offen offset:{1024*t}{SM}")
        A(f"buffer_store_dwordx4 {vr(20*(i&1)+16,4)}, v{T+4}, s[4:7], s30 offen{SM}")

def rowload(A):
    A(f"""s_mul_i32 s26, s73, 1280
    v_mul_u32_u24 v{XS+5}, 20, v207
    buffer_load_dwordx4 {vr(XS,4)}, v{XS+5}, s[8:11], s26 offen
    buffer_load_dword v{XS+4}, v{XS+5}, s[8:11], s26 offen offset:16""")
def rowstat(A):
    S=XS+6; Q=XS+7
    for i in range(5):
        A(f"v_lshlrev_b32 v{U}, 16, v{XS+i}\nv_and_b32 v{U+1}, s32, v{XS+i}")
        if i==0: A(f"v_add_f32 v{S}, v{U}, v{U+1}\nv_mul_f32 v{Q}, v{U}, v{U}\nv_fmac_f32 v{Q}, v{U+1}, v{U+1}")
        else: A(f"v_add_f32 v{S}, v{S}, v{U}\nv_fmac_f32 v{Q}, v{U}, v{U}\nv_add_f32 v{S}, v{S}, v{U+1}\nv_fmac_f32 v{Q}, v{U+1}, v{U+1}")
    for d in ["row_shr:1","row_shr:2","row_shr:4","row_shr:8","row_bcast:15 row_mask:0xa","row_bcast:31 row_mask:0xc"]:
        bc = " bound_ctrl:0" if "shr" in d else ""
        A(f"s_nop 1\nv_add_f32_dpp v{S}, v{S}, v{S} {d}{bc}\nv_add_f32_dpp v{Q}, v{Q}, v{Q} {d}{bc}")
    A(f"""v_mul_f32 v{S}, {hx(-1/640)}, v{S}
    v_mul_f32 v{Q}, {hx(1/640)}, v{Q}
    v_fma_f32 v{Q}, -v{S}, v{S}, v{Q}
    v_max_f32 v{Q}, 0, v{Q}
    v_add_f32 v{Q}, {hx(1e-5)}, v{Q}
    v_rsq_f32 v{Q}, v{Q}
    v_cmp_eq_u32 vcc, 63, v207
    v_mov_b32 v{U}, 0x40000000
    s_lshl_b32 s26, s73, 3
    v_cndmask_b32 v{U}, v{U}, 0, vcc
    buffer_store_dwordx2 {vr(S,2)}, v{U}, s[64:67], s26 offen sc1""")
def flagset(A,P): flag_put(A,U,207,72,FL_OFF)
def flagpoll(A,P):
    A(f"""s_cmp_lg_u32 s20, 0
    s_cbranch_scc1 FP{P}_done
    v_and_b32 v{U}, 7, v207
    s_and_b32 s26, s72, 31
    v_lshl_add_u32 v{U}, v{U}, 5, s26
    s_and_b32 s26, s72, 0xe0
    v_add_u32 v{U+1}, s26, v207
    v_cmp_gt_u32 vcc, 32, v207
    s_nop 1
    v_cndmask_b32 v{U}, v{U}, v{U+1}, vcc""")
    flag_wait(A,P,U,FL_OFF)
```

```python
from common import *
LN=251; FA_OFF=FL_OFF+32768; FO_OFF=FL_OFF+65536; CNT=73728; RED=81920
def attn(A):
    S=0; KF=144; O=198; QF=214; HP=226; T=230
    A(f"""ATT:
    s_sub_u32 s23, s20, 4
    s_and_b32 s3, s2, 7
    s_lshr_b32 s4, s2, 3
    s_and_b32 s5, s4, 1
    s_lshl_b32 s21, s3, 1
    s_add_u32 s21, s21, s5
    s_lshr_b32 s22, s4, 1
    s_lshr_b32 s3, s21, 2
    v_and_b32 v{T}, 3, v{LN}
    v_min_u32 v{T}, 2, v{T}
    v_lshl_add_u32 v{T}, v{T}, 2, s3
    s_mov_b32 s4, {(2**32+2)//3}
    v_mul_hi_u32 v{T+1}, v{T}, s4
    v_mul_u32_u24 v{T+2}, 5, v{T+1}
    v_add_u32 v{T}, v{T}, v{T+2}
    s_lshr_b32 s4, s22, 1
    s_sub_u32 s5, s4, 1
    s_max_i32 s5, s5, 0
    s_lshl_b32 s4, s4, 5
    s_lshl_b32 s5, s5, 5
    v_add_u32 v{T+1}, s5, v{T}
    v_add_u32 v{T}, s4, v{T}
    v_cmp_gt_u32 vcc, 32, v{LN}
    s_nop 1
    v_cndmask_b32 v{T}, v{T+1}, v{T}, vcc""")
    flag_wait(A,'Q2',T,FA_OFF)
    A(f"""s_lshr_b32 s3, s23, 1
    s_and_b32 s4, s23, 1
    s_lshl_b32 s4, s4, 5
    s_lshl_b32 s5, s21, 1
    s_add_u32 s3, s3, s5
    s_add_u32 s3, s3, s4
    s_add_u32 s3, s3, 32
    s_mul_i32 s3, s3, {QKV_PLANE}
    s_add_u32 s8, s48, s3
    s_addc_u32 s9, s49, 0
    s_mov_b32 s10, {QKV_PLANE}
    s_mov_b32 s11, 0x20000
    s_mul_i32 s3, s5, {QKV_PLANE}
    s_add_u32 s12, s48, s3
    s_addc_u32 s13, s49, 0
    s_mov_b32 s14, {2*QKV_PLANE}
    s_mov_b32 s15, 0x20000
    s_mul_i32 s27, s22, 6144
    s_sub_u32 s27, s27, 12288
    s_mul_i32 s28, s23, 18432
    v_lshlrev_b32 v{T}, 4, v{LN}
    s_mov_b32 s29, 0
    ATT_dma:
    s_cmp_lt_i32 s27, 0
    s_cselect_b32 s30, 0x40000000, s27
    s_mov_b32 m0, s28
    s_add_u32 s27, s27, 3072
    s_add_u32 s28, s28, 3072
    buffer_load_dwordx4 v{T}, s[8:11], s30 offen sc1 lds
    buffer_load_dwordx4 v{T}, s[8:11], s30 offen offset:1024 sc1 lds
    buffer_load_dwordx4 v{T}, s[8:11], s30 offen offset:2048 sc1 lds
    s_add_u32 s29, s29, 1
    s_cmp_lt_u32 s29, 6
    s_cbranch_scc1 ATT_dma
    s_lshl_b32 s25, s23, 5
    s_lshl_b32 s26, s22, 7
    s_add_u32 s26, s26, s25
    v_and_b32 v{T+1}, 31, v{LN}
    v_lshrrev_b32 v{T+2}, 5, v{LN}
    v_add_u32 v{T+3}, s26, v{T+1}
    v_mul_u32_u24 v{T+4}, 48, v{T+3}
    v_lshlrev_b32 v{T+5}, 30, v{T+2}
    v_add3_u32 v{T+5}, v{T+5}, v{T+4}, 32
    v_lshl_add_u32 v{T+4}, v{T+2}, 4, v{T+4}
    s_mov_b32 s30, {QKV_PLANE}
    buffer_load_dwordx4 {vr(QF,4)}, v{T+4}, s[12:15], 0 offen sc1
    buffer_load_dwordx2 {vr(QF+4,2)}, v{T+5}, s[12:15], 0 offen sc1
    buffer_load_dwordx4 {vr(QF+6,4)}, v{T+4}, s[12:15], s30 offen sc1
    buffer_load_dwordx2 {vr(QF+10,2)}, v{T+5}, s[12:15], s30 offen sc1""")
    srd(A,4,48,HO_BYTES,HO_OFF)
    A(f"""v_lshlrev_b32 v{T+6}, 2, v{T+2}
    v_sub_u32 v{T+6}, v{T+6}, v{T+1}
    v_add_u32 v{T+16}, 16, v{T+6}
    v_mov_b32 v{T+7}, 0xf149f2ca
    v_add_u32 v{T+8}, s25, v{T+1}
    v_mul_u32_u24 v{T+8}, 48, v{T+8}
    v_add_u32 v{T+9}, 32, v{T+8}
    v_lshl_add_u32 v{T+8}, v{T+2}, 4, v{T+8}
    v_bfe_u32 v{T+10}, v{LN}, 2, 2
    v_lshl_add_u32 v{T+10}, v{T+2}, 2, v{T+10}
    v_add_u32 v{T+10}, s25, v{T+10}
    v_mul_u32_u24 v{T+10}, 48, v{T+10}
    v_bfe_u32 v{T+11}, v{LN}, 4, 1
    v_and_b32 v{T+12}, 3, v{LN}
    v_lshl_add_u32 v{T+11}, v{T+11}, 2, v{T+12}
    v_lshlrev_b32 v{T+11}, 2, v{T+11}
    s_mov_b32 s30, 0x55543120
    s_mov_b32 s31, 0x55504231
    v_lshrrev_b32 v{T+12}, v{T+11}, s30
    v_lshrrev_b32 v{T+11}, v{T+11}, s31
    v_and_b32 v{T+12}, 15, v{T+12}
    v_and_b32 v{T+11}, 15, v{T+11}
    v_add_u32 v{T+10}, 18432, v{T+10}
    v_lshl_add_u32 v{T+17}, v{T+11}, 3, v{T+10}
    v_add_u32 v{T+17}, 36864, v{T+17}
    v_lshl_add_u32 v{T+10}, v{T+12}, 3, v{T+10}
    v_lshrrev_b32 v{T+4}, 4, v{T+3}
    v_mul_u32_u24 v{T+4}, {74*1024}, v{T+4}
    v_and_b32 v{T+3}, 15, v{T+3}
    v_lshl_add_u32 v{T+4}, v{T+3}, 4, v{T+4}
    s_mul_i32 s34, s21, 1280
    s_add_u32 s34, s34, {54*1024}
    v_add_u32 v{T+4}, s34, v{T+4}
    v_lshl_add_u32 v{T+3}, v{T+2}, 8, v{T+4}
    v_lshlrev_b32 v{T+5}, 30, v{T+2}
    v_add_u32 v{T+5}, v{T+5}, v{T+4}
    s_lshl_b32 s31, s22, 2
    s_add_u32 s31, s31, s23
    s_sub_i32 s31, 8, s31
    v_mov_b32 v{T+12}, {CNT}
    v_mov_b32 v{T+13}, 1
    s_waitcnt vmcnt(0)
    s_mov_b64 exec, 1
    ds_add_u32 v{T+12}, v{T+13}
    s_mov_b64 exec, -1
    ATT_sp:
    ds_read_b32 v{T+13}, v{T+12}
    s_waitcnt lgkmcnt(0)
    v_readfirstlane_b32 s3, v{T+13}
    s_cmp_lt_u32 s3, 4
    s_cbranch_scc1 ATT_sp
    s_mov_b32 s35, 0
    ATT_u:""")
    for t in range(9): A(f"ds_read_b128 {vr(KF+6*t,4)}, v{T+8} offset:{t*1536}")
    for t in range(5): A(f"ds_read_b64 {vr(KF+6*t+4,2)}, v{T+9} offset:{t*1536}")
    def cmp(r):
        c=8*(r>>2)+(r&3)
        return f"v_cmp_lt_i32 {sr(36+2*(r%3),2)}, {-c if c<16 else 16-c}, v{T+6 if c<16 else T+16}"
    A(cmp(0)); A(cmp(1))
    for r in range(16):
        A(cmp(r+2) if r+2<16 else "s_nop 0")
        A(f"v_cndmask_b32 v{S+r}, v{T+7}, 0, {sr(36+2*(r%3),2)}\nv_cndmask_b32 v{S+128+r}, 0, v{T+7}, {sr(36+2*(r%3),2)}")
    A("s_nop 0")
    for t in range(9):
        A(f"s_waitcnt lgkmcnt({14-(t+1)+min(t,4)})")
        c = vr(S+16*t,16) if t in (0,8) else "0"
        A(f"v_mfma_f32_32x32x16_bf16 {vr(S+16*t,16)}, {vr(KF+6*t,4)}, {vr(QF,4)}, {c}")
        if t<4: A(f"ds_read_b64 {vr(KF+6*(t+5)+4,2)}, v{T+9} offset:{(t+5)*1536}")
    A("s_waitcnt lgkmcnt(0)")
    for t in range(9): A(f"v_mfma_f32_32x32x8_bf16 {vr(S+16*t,16)}, {vr(KF+6*t+4,2)}, {vr(QF+4,2)}, {vr(S+16*t,16)}")
    VF=KF; P=KF+32
    def vread(t):
        b=VF+8*(t%4)
        return [f"ds_read_b64_tr_b16 {vr(b+4*u+2*z,2)}, v{T+10} offset:{t*1536+(16*u+8*z)*48}" for u in range(2) for z in range(2)]
    for t in range(3):
        for x in vread(t): A(x)
    A("s_cmp_le_i32 s31, 0\ns_cbranch_scc1 ATT_nofix\ns_nop 7\ns_nop 7")
    for t in range(8):
        for r in range(16): A(f"v_mov_b32 v{S+16*t+r}, v{T+7}")
        if t<7: A(f"s_cmp_le_i32 s31, {t+1}\ns_cbranch_scc1 ATT_nofix")
    A("ATT_nofix:")
    M=T+12
    for t in range(9):
        for p in range(8):
            m=M+(p&3); a=S+16*t+2*p
            if t==0 and p<4: A(f"v_max_f32 v{m}, v{a}, v{a+1}")
            else: A(f"v_max3_f32 v{m}, v{a}, v{a+1}, v{m}")
    A(f"""v_max3_f32 v{M}, v{M}, v{M+1}, v{M+2}
    v_max_f32 v{M}, v{M}, v{M+3}
    v_mov_b32 v{M+1}, v{M}
    s_nop 1
    v_permlane32_swap_b32 v{M}, v{M+1}
    s_nop 1
    v_max_f32 v{M}, v{M}, v{M+1}""")
    for t in range(9):
        a=S+16*t; Pb=P+8*(t&1)
        for i in range(16): A(f"v_sub_f32 v{a+i}, v{a+i}, v{M}")
        for i in range(16): A(f"v_exp_f32 v{a+i}, v{a+i}")
        if t+3<9:
            for x in vread(t+3): A(x)
        else: A("s_nop 0")
        for p in range(8): A(f"v_cvt_pk_bf16_f32 v{Pb+p}, v{a+2*p}, v{a+2*p+1}")
        A(f"s_waitcnt lgkmcnt({4*min(3,8-t)})\ns_nop 0")
        b=VF+8*(t%4)
        for u in range(2): A(f"v_mfma_f32_32x32x16_bf16 {vr(O,16)}, {vr(b+4*u,4)}, {vr(Pb+4*u,4)}, {vr(O,16) if t or u else 0}")
    A(f"s_nop 7\ns_nop 4\nv_rcp_f32 v{M}, v{O+12}\nv_mov_b32 v{HP}, v{HP+2}\nv_mov_b32 v{HP+1}, v{HP+3}")
    for p in range(6): A(f"v_pk_mul_f32 {vr(O+2*p,2)}, {vr(O+2*p,2)}, {vr(M,2)} op_sel_hi:[1,0]")
    for p in range(4): A(f"v_cvt_pk_bf16_f32 v{P+16+p}, v{O+2*p}, v{O+2*p+1}")
    for p in range(2): A(f"v_cvt_pk_bf16_f32 v{HP+2+p}, v{O+8+2*p}, v{O+9+2*p}")
    A(f"buffer_store_dwordx4 {vr(P+16,4)}, v{T+3}, s[4:7], 0 offen sc1")
    for i in range(6): A(f"v_mov_b32 v{QF+i}, v{QF+6+i}")
    A(f"""v_add_u32 v{T+3}, 768, v{T+3}
    v_add_u32 v{T+8}, 36864, v{T+8}
    v_add_u32 v{T+9}, 36864, v{T+9}
    v_mov_b32 v{T+10}, v{T+17}
    s_add_u32 s35, s35, 1
    s_cmp_lt_u32 s35, 2
    s_cbranch_scc1 ATT_u
    buffer_store_dwordx4 {vr(HP,4)}, v{T+5}, s[4:7], 0 offen offset:512 sc1
    v_mov_b32 v{T+12}, {CNT}
    v_mov_b32 v{T+13}, 1
    s_waitcnt vmcnt(0)
    s_mov_b64 exec, 1
    ds_add_rtn_u32 v{T+13}, v{T+12}, v{T+13} offset:4
    s_mov_b64 exec, -1
    s_waitcnt lgkmcnt(0)
    v_readfirstlane_b32 s3, v{T+13}
    s_cmp_lg_u32 s3, 3
    s_cbranch_scc1 K1_exit
    s_lshl_b32 s3, s22, 4
    s_add_u32 s3, s3, s21
    s_mov_b32 s20, 4""")
    flag_put(A,T,LN,3,FO_OFF,wave=4)
    A(f"v_and_b32 v{T}, 15, v{LN}\ns_lshr_b32 s3, s50, 1\ns_lshl_b32 s3, s3, 4\nv_add_u32 v{T}, s3, v{T}")
    flag_wait(A,'O2',T,FO_OFF)
    A(f"v_mov_b32 v{T+13}, 1\nds_write_b32 v{T+12}, v{T+13} offset:8\ns_waitcnt lgkmcnt(0)\ns_endpgm")
def gen(A):
    ACC=0; F=80; XR=224; VA=234; VW=238; T=240; NSET=4
    A(f"""PHB:
    s_load_dwordx2 s[46:47], s[0:1], 56
    v_mov_b32 v{LN}, v207
    v_mov_b32 v{T}, {CNT}
    v_mov_b32 v{T+2}, 0
    v_mov_b32 v{T+3}, 0
    s_and_b32 s3, s2, 7
    s_lshr_b32 s4, s2, 3
    s_lshr_b32 s5, s3, 1
    s_lshl_b32 s5, s5, 3
    s_and_b32 s6, s4, 7
    s_add_u32 s50, s5, s6
    s_and_b32 s3, s3, 1
    s_lshl_b32 s3, s3, 2
    s_lshr_b32 s4, s4, 3
    s_add_u32 s51, s3, s4
    s_waitcnt vmcnt(0) lgkmcnt(0)
    s_barrier
    ds_write_b64 v{T}, {vr(T+2,2)}
    ds_write_b32 v{T}, v{T+2} offset:8""")
    flag_put(A,T+4,LN,72,FA_OFF)
    A("s_waitcnt lgkmcnt(0)\ns_barrier\ns_cmp_ge_u32 s20, 4\ns_cbranch_scc1 ATT")
    stamp(A,3)
    A(f"""s_lshr_b32 s3, s50, 2
    s_lshl_b32 s3, s3, 5
    v_add_u32 v{T}, s3, v{LN}
    v_and_b32 v{T+1}, 7, v{LN}
    v_lshlrev_b32 v{T+1}, 5, v{T+1}
    v_and_b32 v{T+2}, 8, v{LN}
    v_add3_u32 v{T+1}, v{T+1}, v{T+2}, 23
    v_cmp_gt_u32 vcc, 32, v{LN}
    s_lshl_b32 s21, s50, 6
    s_mul_i32 s22, s51, 160
    v_cndmask_b32 v{T}, v{T+1}, v{T}, vcc
    s_mul_i32 s27, s20, 14
    s_cmp_eq_u32 s20, 3
    s_cselect_b32 s27, 41, s27
    s_mul_i32 s5, s50, {4*74*1024}
    s_mul_i32 s3, s51, {74*5120}
    v_lshl_add_u32 v{VA}, v{LN}, 4, s5
    v_add_u32 v{VA+1}, {74*1024}, v{VA}
    v_add_u32 v{VA+2}, {2*74*1024}, v{VA}
    v_add_u32 v{VA+3}, {3*74*1024}, v{VA}
    v_lshl_add_u32 v{VW}, v{LN}, 4, s3
    v_add_u32 v{VW+1}, 4096, v{VW}
    s_lshl_b32 s30, s27, 10
    s_mul_i32 s31, s27, 5120
    v_and_b32 v{T+5}, 15, v{LN}
    v_lshrrev_b32 v{T+4}, 4, v{LN}
    s_lshl_b32 s3, s20, 4
    s_add_u32 s3, s3, s21
    v_add_u32 v{T+5}, s3, v{T+5}
    v_mul_u32_u24 v{T+5}, 1280, v{T+5}
    v_lshl_add_u32 v{T+5}, v{T+4}, 3, v{T+5}
    v_add_u32 v{T+8}, s22, v{T+5}""")
    srd(A,4,40,2621440); srd(A,8,48,HO_BYTES,HO_OFF); srd(A,12,48,WP_BYTES,WP_OFF); srd(A,16,46,2621440)
    for t in range(5): A(f"buffer_load_dwordx2 {vr(XR+2*t,2)}, v{T+8}, s[4:7], 0 offen offset:{32*t}")
    flag_wait(A,'H2',T,FA_OFF)
    stamp(A,4)
    def ld(i):
        b=F+36*(i%NSET); pre=""
        if i==13: pre="s_cmp_ge_u32 s20, 2\ns_cselect_b32 s30, 0x40000000, s30\n"
        if i==14: pre=f"""v_mov_b32 v{T}, {CNT}
            s_mov_b32 s26, 0x1000000
            GO_sp:
            ds_read_b32 v{T+1}, v{T} offset:8
            s_sub_u32 s26, s26, 1
            s_cbranch_scc1 GO_dn
            s_waitcnt lgkmcnt(0)
            v_readfirstlane_b32 s3, v{T+1}
            s_cmp_eq_u32 s3, 0
            s_cbranch_scc1 GO_sp
            GO_dn:
            s_mul_i32 s3, s20, 5
            s_add_u32 s3, s3, 54
            s_lshl_b32 s30, s3, 10
            s_mul_i32 s31, s3, 5120
            """
        L=[f"buffer_load_dwordx4 {vr(b+16+4*t,4)}, v{VW+(t>>2)}, s[12:15], s31 offen offset:{(t&3)*1024} sc1" for t in range(5)]
        L+=[f"buffer_load_dwordx4 {vr(b+4*j,4)}, v{VA+j}, s[8:11], s30 offen sc1" for j in range(4)]
        L[0]=pre+L[0]
        L[-1]+="\ns_add_u32 s30, s30, 1024\ns_add_u32 s31, s31, 5120"
        return L
    def mf(i):
        b=F+36*(i%NSET)
        return [f"v_mfma_f32_16x16x32_bf16 {vr(ACC+4*(5*j+t),4)}, {vr(b+16+4*t,4)}, {vr(b+4*j,4)}, {vr(ACC+4*(5*j+t),4) if i else 0}" for t in range(5) for j in range(4)]
    for i in range(NSET-1):
        for x in ld(i): A(x)
    for i in range(19):
        nxt=i+NSET-1
        A(f"s_waitcnt vmcnt({9*(min(19,i+NSET-1)-1-i)})")
        for x in interleave(mf(i), ld(nxt) if nxt<19 else []): A(x)
    A(f"""s_mul_i32 s3, s20, 20480
    s_add_u32 s3, s3, {RED}
    v_lshl_add_u32 v{T}, v{LN}, 4, s3
    s_mul_i32 s3, s20, 5120
    s_add_u32 s3, s3, {RED}
    v_lshl_add_u32 v{T+1}, v{LN}, 4, s3
    v_add_u32 v{T+2}, 40960, v{T+1}
    s_nop 4""")
    for i in range(20): A(f"ds_write_b128 v{T}, {vr(ACC+4*i,4)} offset:{i*1024}")
    A("s_waitcnt lgkmcnt(0)\ns_barrier")
    def rr(t):
        for w in range(4): A(f"ds_read_b128 {vr(16*t+4*w,4)}, v{T+1+(w>>1)} offset:{(w&1)*20480+t*1024}")
    rr(0); rr(1); rr(2)
    for t in range(5):
        b=16*t
        A(f"s_waitcnt lgkmcnt({[8,8,8,4,0][t]})")
        if t<2: rr(t+3)
        A(f"""v_lshlrev_b32 v{F}, 16, v{XR+2*t}
        v_and_b32 v{F+1}, 0xffff0000, v{XR+2*t}
        v_lshlrev_b32 v{F+2}, 16, v{XR+2*t+1}
        v_and_b32 v{F+3}, 0xffff0000, v{XR+2*t+1}""")
        for p in range(2):
            A(f"""v_pk_add_f32 {vr(b+2*p,2)}, {vr(b+2*p,2)}, {vr(b+4+2*p,2)}
            v_pk_add_f32 {vr(b+8+2*p,2)}, {vr(b+8+2*p,2)}, {vr(b+12+2*p,2)}
            v_pk_add_f32 {vr(b+2*p,2)}, {vr(b+2*p,2)}, {vr(F+2*p,2)}
            v_pk_add_f32 {vr(b+2*p,2)}, {vr(b+2*p,2)}, {vr(b+8+2*p,2)}""")
        A(f"v_cvt_pk_bf16_f32 v{b+4}, v{b}, v{b+1}\nv_cvt_pk_bf16_f32 v{b+5}, v{b+2}, v{b+3}")
        A(f"buffer_store_dwordx2 {vr(b+4,2)}, v{T+8}, s[16:19], 0 offen offset:{32*t}")
    stamp_out(A,0,LN,T+9)
    A("s_endpgm")
    attn(A)
```

```python
import sys; sys.path.insert(0,'gen')
from common import *
import k1
N='parallel_sum__sliding_block__geglu_ffn__prompt'
hdr=open(f'cdna_kernels/{N}.s.ref').read().split('; Override')[0]
A=Asm()
ks=[(KNAME,512,k1.K1_LDS,k1.K1_VG,k1)]
s=hdr
for n,b,l,v,m in ks: s+=f"; @launch {'kernel='+n+' ' if os.environ.get('LIST') else ''}grid=(256,1,1) block=({b},1,1) lds={l}\n"
s+='.amdgcn_target "amdgcn-amd-amdhsa--gfx950"\n.text\n'
for n,b,l,v,m in ks: m.gen(A)
s+=A.txt()+'.section .rodata,"a"\n'
for n,b,l,v,m in ks: s+=desc(n,v)
out=sys.argv[1] if len(sys.argv)>1 else f'cdna_kernels/{N}.s'
open(out,'w').write(s)
```

```python
from common import *
import math, k23
SM=' sc1'
NS=5; XW=3*4096; WB=8*XW; WS=12416; CSB=WB+NS*WS; K1_LDS=163840
ACC=0; FA=96; FB=124; CSR=152; VSUM=158; VSQ=159; VCS=160
VX=184; VW=165; VXR=188; VWR=168; VCR=169; T=170; U=192; PF=200; VS2=163; VQ2=164
XS=152; WL=208; END=228
K1_VG=252
def variant(A, NT, gu):
    P='G' if gu else 'Q'
    pitch=3456 if gu else 3840
    RD=NT*1024+128
    A(f"""
    s_mul_i32 s24, s20, {XW}
    s_mul_i32 s25, s20, {NT*128}
    s_add_u32 s25, s25, {WB}
    v_lshrrev_b32 v{T}, 3, v207
    v_bfe_u32 v{T+1}, v207, 1, 2
    v_and_b32 v{T+2}, 1, v207
    s_lshl_b32 s26, s20, 2
    v_add_u32 v{T+1}, s26, v{T+1}
    v_mul_u32_u24 v{T+1}, {pitch}, v{T+1}
    v_lshlrev_b32 v{T}, 5, v{T}
    v_lshl_add_u32 v{T}, v{T+2}, 4, v{T}
    s_lshl_b32 s26, s22, 1
    v_add3_u32 v{VW}, v{T}, v{T+1}, s26
    v_lshrrev_b32 v{T}, 5, v207
    v_bfe_u32 v{T+1}, v207, 4, 1
    v_and_b32 v{T+2}, 1, v207
    v_bfe_u32 v{T+3}, v207, 2, 2
    v_bfe_u32 v{T+4}, v207, 1, 1
    v_mul_u32_u24 v{T+5}, {RD}, v{T+1 if gu else T+2}
    v_lshl_add_u32 v{T+5}, v{T+2 if gu else T+1}, 4, v{T+5}
    v_lshl_add_u32 v{T+5}, v{T+3}, 5, v{T+5}
    v_lshl_add_u32 v{T+5}, v{T+4}, 3, v{T+5}
    v_mul_u32_u24 v{T+6}, {2*NT*128}, v{T}
    v_add_u32 v{VWR}, {WB}, v{T+5}
    v_add_u32 v{VWR}, v{T+6}, v{VWR}
    s_lshr_b32 s56, s20, 2
    s_mul_i32 s26, s56, {3*128 if gu else 0}
    v_add_u32 v{VWR}, s26, v{VWR}
    """)
    ehi = 0xffff if gu else 0xff
    def dmax(g):
        n=g>>1; j0=2*(g&1)
        return [f"s_add_u32 m0, s24, {(n%3)*4096+(j0+j)*1024}\ns_movk_i32 s30, {n*128}\nbuffer_load_dwordx4 v{VX+j0+j}, s[8:11], s30 offen lds" for j in range(2)]
    def dmaw(st):
        sl=st%NS
        return [f"s_add_u32 m0, s25, {sl*WS+R*RD}\ns_mov_b32 s31, {st*32*pitch}\ns_mov_b32 exec_hi, {ehi}\nbuffer_load_dwordx4 v{VW}, s[{12+4*R}:{15+4*R}], s31 offen lds\ns_mov_b32 exec_hi, -1" for R in range(2)]
    for d in dmaw(0)+dmax(0)+dmax(1): A(d)
    A('s_barrier')
    for d in dmaw(1): A(d)
    A0=A; A=Asm()
    nonce_put(A,T)
    rowload(A)
    NC=2*NT
    A(f"""v_and_b32 v{T}, 15, v207
    v_lshrrev_b32 v{T+1}, 4, v207
    s_and_b32 s3, s20, 3
    s_lshl_b32 s26, s3, 2
    s_mul_i32 s33, s57, 80
    s_add_u32 s26, s26, s33
    v_add_u32 v{T+2}, s26, v{T+1}
    v_mul_u32_u24 v{T+2}, {pitch}, v{T+2}
    v_lshl_add_u32 v{T+2}, v{T}, 4, v{T+2}
    s_lshl_b32 s26, s22, 1
    v_add_u32 v{T+2}, s26, v{T+2}
    v_cmp_gt_u32 vcc, {NC}, v{T}
    v_mov_b32 v{T+3}, 0x40000000
    s_cmp_eq_u32 s56, 0
    s_cselect_b32 s60, s12, s16
    s_cselect_b32 s61, s13, s17
    s_cselect_b32 s62, s14, s18
    s_mov_b32 s63, 0x20000
    v_cndmask_b32 v{T+2}, v{T+3}, v{T+2}, vcc""")
    for i in range(5): A(f"s_mov_b32 s26, {16*i*pitch}\nbuffer_load_dwordx4 {vr(WL+4*i,4)}, v{T+2}, s[60:63], s26 offen")
    A(f"""v_lshrrev_b32 v{T+2}, 1, v{T}
    v_and_b32 v{T}, 1, v{T}
    v_lshlrev_b32 v{T+2}, 7, v{T+2}
    v_lshl_add_u32 v{T+2}, v{T}, {4 if gu else 6}, v{T+2}
    v_lshrrev_b32 v{T}, 1, v{T+1}
    v_lshl_add_u32 v{T+2}, v{T}, 5, v{T+2}
    v_and_b32 v{T}, 1, v{T+1}
    v_lshl_add_u32 v{T+2}, v{T}, 3, v{T+2}
    s_lshl_b32 s26, s56, {6 if gu else 4}
    s_mul_i32 s3, s3, 768
    s_add_u32 s26, s26, s3
    s_add_u32 s26, s26, {CSB}
    v_add_u32 v{T+2}, s26, v{T+2}
    v_mov_b32 v{T+3}, {CSB+3072}
    v_cndmask_b32 v{VCR}, v{T+3}, v{T+2}, vcc
    s_mov_b32 s29, 0x3f803f80""")
    PL=A.L; A=A0
    NX=2 if gu else 1; NW_=3 if gu else 5
    def reads(F, st, ks):
        sl=st%NS; L=[]
        xs=[f"ds_read_b128 {vr(F+4*j,4)}, v{VXR+2*(st&1)+ks} offset:{((st>>1)%3)*4096+j*XW}" for j in range(NX)]
        for t in range(NW_):
            if t<NX: L.append(xs[t])
            for e in range(2):
                L.append(f"ds_read_b64_tr_b16 {vr(F+8+4*t+2*e,2)}, v{VWR} offset:{sl*WS+((4*ks+e)*NT+t)*128}")
        return L if 'noread' not in EXP else []
    def mf(F,z=False): return [f"v_mfma_f32_32x32x16_bf16 {vr(ACC+16*(NW_*j+t),16)}, {vr(F+8+4*t,4)}, {vr(F+4*j,4)}, {0 if z else vr(ACC+16*(NW_*j+t),16)}" for t in range(NW_) for j in range(NX)]
    def half(m, rd, extra):
        out=[]; per=(len(rd)+2)//3
        for i,x in enumerate(m):
            out.append(x)
            out+=rd[:per]; rd=rd[per:]
            if i>=2 and extra:
                n=(len(extra)+len(m)-1-i)//(len(m)-i); out+=extra[:n]; extra=extra[n:]
        return out+rd+extra
    SS=[int(x) for x in os.environ.get('SS','').split(',') if x]
    if 'skipdma' in EXP: dmax=lambda g: []; dmaw=lambda g: []
    if 'nomfma' in EXP: mf=lambda F,z=False: ["s_nop 0"]*(NX*NW_)
    log=['w0','w0','x0','x0','x1','x1','w1','w1']
    S0=6
    for st in range(20):
        need={f"w{st}",f"x{st&~1}",f"x{st|1}"}
        if st==S0: need.add('p')
        if st==19: need.add('q')
        if st==S0+3: need.add('n')
        if st==S0+5: need.add('s')
        last=max([i for i,x in enumerate(log) if x in need]+[-1])
        A(f"s_waitcnt vmcnt({min(63,len(log)-1-last)}) lgkmcnt(0)\ns_barrier")
        if st in SS: stamp(A,1+SS.index(st))
        dx=dmax(st+4) if st+4<20 else []; dw=dmaw(st+4) if st+4<20 else []
        ex=[]; ex2=[]
        if st==S0:
            B=Asm(); rowstat(B); ex=[l for l in B.L]
            for e in range(8):
                u=U+e
                for i in range(5):
                    r=WL+4*i+(e>>1); d=u if i==0 else T+(i&1)
                    ex.append(f"v_and_b32 v{d}, s32, v{r}" if e&1 else f"v_lshlrev_b32 v{d}, 16, v{r}")
                    if i: ex.append(f"v_add_f32 v{u}, v{u}, v{d}")
            ex.append("s_nop 1")
            ex+=[f"v_permlane32_swap_b32 v{U+i}, v{U+4+i}" for i in range(4)]+["s_nop 1"]
            ex+=[f"v_add_f32 v{U+i}, v{U+i}, v{U+4+i}" for i in range(4)]+["s_nop 1"]
            ex+=[f"v_permlane16_swap_b32 v{U+i}, v{U+2+i}" for i in range(2)]+["s_nop 1"]
            ex+=[f"v_add_f32 v{U+i}, v{U+i}, v{U+2+i}" for i in range(2)]
            ex.append(f"ds_write_b64 v{VCR}, {vr(U,2)}")
            n=(len(ex)+5)//6; parts=["\n".join(ex[i:i+n]) for i in range(0,len(ex),n)]
            ex=parts[:3]; ex2=parts[3:]
        if st==S0+1:
            ex=[f"""v_lshl_add_u32 v{U}, s20, 6, v207
            v_cmp_gt_u32 vcc, 192, v{U}
            v_lshlrev_b32 v{U}, 2, v{U}
            v_add_u32 v{U+1}, {CSB}, v{U}
            ds_read_b32 v{U+2}, v{U+1}
            ds_read_b32 v{U+3}, v{U+1} offset:768
            ds_read_b32 v{U+4}, v{U+1} offset:1536
            ds_read_b32 v{U+5}, v{U+1} offset:2304
            v_mov_b32 v{U+1}, 0x40000000
            s_lshl_b32 s26, s58, 3
            s_add_u32 s26, s26, s57
            s_mul_i32 s33, s26, 768
            s_add_u32 s33, s33, {CSP_OFF}
            v_cndmask_b32 v{U}, v{U+1}, v{U}, vcc"""]
            ex2=[f"""v_add_f32 v{U+2}, v{U+2}, v{U+3}
            v_add_f32 v{U+4}, v{U+4}, v{U+5}
            v_add_f32 v{U+2}, v{U+2}, v{U+4}
            buffer_store_dword v{U+2}, v{U}, s[64:67], s33 offen sc1"""]
        if st==S0+3:
            B=Asm(); B(f"v_readfirstlane_b32 s82, v{PF}\ns_cmp_lg_u32 s82, 0\ns_cbranch_scc1 NG{P}_done"); nonce_get(B,P,U,-1); ex=["\n".join(B.L)]
        if st==4:
            ex=[f"v_mov_b32 v{PF+1}, 0\nbuffer_load_dword v{PF}, v{PF+1}, s[68:71], 0 offen sc1"]; log+=['n']
        if st==S0+5:
            B=Asm(); flagset(B,P); ex=["\n".join(B.L)]; log+=['f']
        if st==15:
            B=Asm(); flagpoll(B,P); ex=["\n".join(B.L)]
        if st==16:
            ex=[f"""v_and_b32 v{U}, 31, v207
            v_add_u32 v{U}, s59, v{U}
            v_lshlrev_b32 v{U}, 3, v{U}
            s_mul_i32 s33, s58, {8*768}
            s_add_u32 s33, s33, {CSP_OFF}
            s_add_u32 s34, s33, {4*768}
            v_lshl_add_u32 v{U+1}, s20, 6, v207
            v_cmp_gt_u32 vcc, 192, v{U+1}
            v_lshlrev_b32 v{U+1}, 2, v{U+1}
            v_mov_b32 v{U+2}, 0x40000000
            v_add_u32 v{VCR}, {CSB}, v{U+1}
            v_mov_b32 v{U+3}, {CSB+3072}
            v_cndmask_b32 v{U+1}, v{U+2}, v{U+1}, vcc
            v_cndmask_b32 v{VCR}, v{U+3}, v{VCR}, vcc"""]
            for j in range(NX): ex.append(f"buffer_load_dwordx2 {vr(WL+4*j,2)}, v{U}, s[64:67], 0 offen offset:{256*j} sc1")
            for j in range(8): ex2.append(f"buffer_load_dword v{WL+8+j}, v{U+1}, s[64:67], s{33+(j>>2)} offen offset:{768*(j&3)} sc1")
            log+=['q']*(NX+8)
        if st==19:
            ex=[f"v_add_f32 v{WL+8+j}, v{WL+8+j}, v{WL+12+j}" for j in range(4)]+[f"v_add_f32 v{WL+8+j}, v{WL+8+j}, v{WL+10+j}" for j in range(2)]
            ex=["\n".join(ex+[f"v_add_f32 v{WL+8}, v{WL+8}, v{WL+9}",f"ds_write_b32 v{VCR}, v{WL+8}"])]
        if st==0:
            dx=dmax(2)+dmaw(2)+dmax(3)+dmaw(3); dw=dmax(4)+dmaw(4)
            log+=[f"{c}{k}" for k in (2,3,4) for c in "xxww"] if dx else []
        elif st==1:
            n=(len(PL)+3)//4; ex2=["\n".join(PL[i:i+n]) for i in range(0,len(PL),n)]
            log+=[f"x{st+4}"]*len(dx)+['p']*8+[f"w{st+4}"]*len(dw)
        elif st in (S0,S0+1): log+=[f"x{st+4}"]*len(dx)+['s']+[f"w{st+4}"]*len(dw)
        else: log+= [f"x{st+4}"]*len(dx)+[f"w{st+4}"]*len(dw)
        if st==0:
            for x in reads(FA,st,0)+dx: A(x)
        else:
            for x in half(mf(FB),reads(FA,st,0), ex+dx): A(x)
        A("s_waitcnt lgkmcnt(0)")
        for x in half(mf(FA,st==0),reads(FB,st,1), ex2+dw): A(x)
    A("s_waitcnt lgkmcnt(0)")
    for x in mf(FB): A(x)
    if not SS: stamp(A,1)
    A(f"""v_and_b32 v{T}, 31, v207
    v_lshrrev_b32 v{T+1}, 5, v207
    v_lshlrev_b32 v{T+2}, 4, v{T+1}
    s_mul_i32 s26, s56, {3*128 if gu else 0}
    s_add_u32 s26, s26, {CSB}
    v_add_u32 v{T+2}, s26, v{T+2}
    v_add_u32 v{T}, s59, v{T}
    s_waitcnt lgkmcnt(0)
    s_barrier
    """)
    if not gu: A(f"v_mul_f32 v{WL+1}, s23, v{WL+1}")
    C=FA
    def norm(t0,t1):
        for t in range(t0,t1):
            for g in range(4): A(f"ds_read_b128 {vr(C+16*(t-t0)+4*g,4)}, v{T+2} offset:{(t*32+8*g)*4}")
        n=(t1-t0)*4
        for t in range(t0,t1):
            for g in range(4):
                n-=1
                A(f"s_waitcnt lgkmcnt({n})")
                for j in range(NX):
                    for p in range(2):
                        a=ACC+16*(NW_*j+t)+4*g+2*p; c=C+16*(t-t0)+4*g+2*p
                        A(f"v_pk_fma_f32 {vr(a,2)}, {vr(c,2)}, {vr(WL+4*j,2)}, {vr(a,2)} op_sel_hi:[1,0,1]")
                    for p in range(2):
                        a=ACC+16*(NW_*j+t)+4*g+2*p
                        A(f"v_pk_mul_f32 {vr(a,2)}, {vr(a,2)}, {vr(WL+4*j,2)} op_sel:[0,1] op_sel_hi:[1,1]")
    norm(0,3)
    if not gu: norm(3,5)
    if gu:
        c0=-2*math.sqrt(2/math.pi)*math.log2(math.e); c1=c0*0.044715
        A(f"""v_lshrrev_b32 v{T+3}, 4, v{T}
        v_mul_u32_u24 v{T+3}, {74*1024}, v{T+3}
        v_and_b32 v{T}, 15, v{T}
        v_lshl_add_u32 v{T}, v{T}, 4, v{T+3}
        v_lshl_add_u32 v{T}, v{T+1}, 8, v{T}
        s_lshl_b32 s26, s22, 5
        s_mul_i32 s3, s56, 1536
        s_add_u32 s26, s26, s3
        s_mov_b32 s33, {2*74*1024}
        v_add_u32 v{T}, s26, v{T}
        s_mov_b32 s34, {hx(c1)}
        s_mov_b32 s36, 1.0
        v_mov_b32 v{T+10}, {hx(c0)}""")
        for t in range(NT):
            a=ACC+16*t; E=FA+16*(t&1); O=E+8
            for p in range(4): A(f"v_pk_mul_f32 {vr(E+2*p,2)}, {vr(a+2*p,2)}, {vr(a+2*p,2)}")
            for p in range(4): A(f"v_pk_fma_f32 {vr(E+2*p,2)}, {vr(E+2*p,2)}, s[34:35], {vr(T+10,2)} op_sel_hi:[1,0,0]")
            for p in range(4): A(f"v_pk_mul_f32 {vr(E+2*p,2)}, {vr(E+2*p,2)}, {vr(a+2*p,2)}")
            for i in range(8): A(f"v_exp_f32 v{E+i}, v{E+i}")
            for p in range(4): A(f"v_pk_mul_f32 {vr(a+2*p,2)}, {vr(a+2*p,2)}, {vr(a+8+2*p,2)}")
            for p in range(4): A(f"v_pk_add_f32 {vr(E+2*p,2)}, {vr(E+2*p,2)}, s[36:37] op_sel_hi:[1,0]")
            for i in range(8): A(f"v_rcp_f32 v{E+i}, v{E+i}")
            A("s_nop 0")
            for p in range(4): A(f"v_pk_mul_f32 {vr(a+2*p,2)}, {vr(a+2*p,2)}, {vr(E+2*p,2)}")
            for p in range(4): A(f"v_cvt_pk_bf16_f32 v{O+p}, v{a+2*p}, v{a+2*p+1}")
            if t==NT-1: k23.early_poll(A)
            A(f"buffer_store_dwordx4 {vr(O,4)}, v{T}, s[4:7], {'s33' if t>=3 else 0} offen offset:{512*(t%3)}{SM}")
    else:
        A(f"""v_and_b32 v{T}, 31, v207
        v_mul_u32_u24 v{T}, 48, v{T}
        s_mul_i32 s26, s20, 12288
        s_movk_i32 s33, 6144
        v_mad_u32_u24 v{T}, v{T+1}, s33, v{T}
        v_add_u32 v{T}, s26, v{T}
        v_lshl_add_u32 v{T+1}, v207, 4, s26
        s_mul_i32 s33, s27, {QKV_PLANE}
        s_mul_i32 s26, s59, 48
        s_add_u32 s33, s33, s26
        v_lshlrev_b32 v{T+3}, 4, v207
        v_add_u32 v{T+5}, {QKV_PLANE+512}, v{T+3}
        v_add_u32 v{T+4}, 1024, v{T+3}
        v_add_u32 v{T+6}, {QKV_PLANE-512}, v{T+3}
        v_cmp_gt_u32 vcc, 32, v207
        s_nop 1
        v_cndmask_b32 v{T+4}, v{T+6}, v{T+4}, vcc""")
        for hd in range(4):
            O=FA+12*hd
            for p in range(10): A(f"v_cvt_pk_bf16_f32 v{O+p}, v{ACC+20*hd+2*p}, v{ACC+20*hd+2*p+1}")
            A(f"v_mov_b32 v{O+10}, s29\nv_mov_b32 v{O+11}, s29")
            for p in range(3): A(f"ds_write_b128 v{T}, {vr(O+4*p,4)} offset:{hd*1536+16*p}")
        A("s_waitcnt lgkmcnt(0)")
        for i in range(12): A(f"ds_read_b128 {vr(4*i,4)}, v{T+1} offset:{1024*i}")
        for i in range(12):
            A(f"s_waitcnt lgkmcnt({11-i})\nbuffer_store_dwordx4 {vr(4*i,4)}, v{T+3+i%3}, s[4:7], s33 offen{SM}")
            if i%3==2: A(f"s_add_u32 s33, s33, {2*QKV_PLANE}")
    A("s_mov_b32 s44, 0")
    if gu: k23.early_kv(A)
    if not SS: stamp(A,2)
    A("s_branch PHB")
import struct
def hx(f): return "0x%08x"%struct.unpack('<I',struct.pack('<f',f))[0]
def gen(A):
    head(A,KNAME)
    A(f"""
    s_cmp_ge_u32 s2, 256
    s_cbranch_scc1 K1_exit
    """); stamp(A,0); A(f"""
    s_load_dwordx4 s[40:43], s[0:1], 0
    s_load_dwordx4 s[44:47], s[0:1], 32
    s_load_dwordx4 s[72:75], s[0:1], 64
    v_lshrrev_b32 v1, 6, v0
    v_and_b32 v207, 63, v0
    s_and_b32 s3, s2, 7
    v_readfirstlane_b32 s20, v1
    s_lshr_b32 s4, s2, 3
    s_and_b32 s5, s3, 1
    s_lshr_b32 s6, s3, 1
    s_and_b32 s7, s4, 3
    s_lshl_b32 s5, s5, 2
    s_add_u32 s5, s5, s7
    s_lshr_b32 s4, s4, 2
    s_lshl_b32 s21, s5, 8
    s_lshl_b32 s7, s20, 5
    s_add_u32 s21, s21, s7
    v_lshrrev_b32 v{T}, 3, v207
    v_add_u32 v{T}, s21, v{T}
    v_mul_u32_u24 v{T}, 1280, v{T}
    v_lshrrev_b32 v{T+1}, 4, v207
    v_xor_b32 v{T+1}, v{T+1}, v207
    v_and_b32 v{T+1}, 7, v{T+1}
    v_lshl_add_u32 v{VX}, v{T+1}, 4, v{T}
    v_xor_b32 v{VX+1}, 64, v{VX}
    v_add_u32 v{VX+1}, {8*1280}, v{VX+1}
    v_add_u32 v{VX+2}, {16*1280}, v{VX}
    v_add_u32 v{VX+3}, {16*1280}, v{VX+1}
    v_and_b32 v{T}, 31, v207
    v_lshrrev_b32 v{T+1}, 5, v207
    v_bfe_u32 v{T+2}, v207, 1, 3
    v_xor_b32 v{T+1}, v{T+1}, v{T+2}
    v_lshlrev_b32 v{T}, 7, v{T}
    v_lshl_add_u32 v{T}, v{T+1}, 4, v{T}
    s_mul_i32 s7, s20, {XW}
    v_add_u32 v{VXR}, s7, v{T}
    v_xor_b32 v{VXR+1}, 32, v{VXR}
    v_xor_b32 v{VXR+2}, 64, v{VXR}
    v_xor_b32 v{VXR+3}, 96, v{VXR}
    s_lshl_b32 s54, s5, 8
    s_lshl_b32 s7, s4, 5
    s_add_u32 s54, s54, s7
    s_and_b32 s55, s5, 3
    s_mul_i32 s55, s55, 160
    s_mov_b32 s50, s4
    s_mov_b32 s51, s6
    s_mov_b32 s57, s5
    s_lshl_b32 s7, s6, 3
    s_add_u32 s7, s7, s4
    s_mov_b32 s32, 0xffff0000
    s_waitcnt lgkmcnt(0)
    s_mov_b32 s48, s74
    s_mov_b32 s49, s75
    """)
    srd(A,68,72,256); srd(A,64,48,CSP_OFF+30*8*768,ST_OFF)
    A("s_lshl_b32 s72, s57, 5\ns_add_u32 s72, s72, s7\ns_lshl_b32 s73, s72, 3\ns_add_u32 s73, s73, s20")
    srd(A,8,40,2621440)
    A(f"""s_cmp_lt_u32 s50, 3
    s_cbranch_scc0 K1_gu
    s_mul_i32 s51, s51, 3
    s_add_u32 s51, s51, s50
    s_mul_i32 s22, s51, 160
    s_mov_b32 s58, s51
    s_mov_b32 s59, s21
    s_lshl_b32 s27, s51, 3
    s_cmp_lt_u32 s51, 4
    s_cselect_b32 s23, {hx(20**-0.5*math.log2(math.e))}, 1.0
    """)
    srd(A,12,42,640*3840); srd(A,16,42,640*3840-160,160); srd(A,4,48,96*QKV_PLANE)
    variant(A,5,False)
    A(f"""K1_gu:
    s_sub_u32 s50, s50, 3
    s_mul_i32 s52, s51, 5
    s_lshl_b32 s53, s51, 2
    s_add_u32 s53, s53, 2
    s_cmp_lt_u32 s51, 2
    s_cselect_b32 s52, s52, s53
    s_cselect_b32 s53, 5, 4
    s_cmp_ge_u32 s50, s53
    s_cbranch_scc1 K1_pack
    s_add_u32 s52, s52, s50
    s_mul_i32 s22, s52, 96
    s_add_u32 s58, s52, 12
    s_and_b32 s3, s20, 3
    s_lshl_b32 s59, s3, 6
    s_lshl_b32 s26, s57, 8
    s_add_u32 s59, s59, s26
    s_lshl_b32 s3, s3, 1
    s_sub_i32 s3, s3, s20
    s_mul_i32 s3, s3, {XW}
    v_add_u32 v{VXR}, s3, v{VXR}
    v_add_u32 v{VXR+1}, s3, v{VXR+1}
    v_add_u32 v{VXR+2}, s3, v{VXR+2}
    v_add_u32 v{VXR+3}, s3, v{VXR+3}
    """)
    srd(A,12,44,640*3456); srd(A,16,46,640*3456); srd(A,4,48,HO_BYTES,HO_OFF)
    variant(A,6,True)
    pack(A)
    import k23; k23.gen(A)
    A("K1_exit:\ns_endpgm")

def pack(A):
    A("K1_pack:")
    A(f"""
    s_load_dwordx2 s[42:43], s[0:1], 16
    s_load_dwordx2 s[44:45], s[0:1], 48
    s_sub_u32 s51, s51, 2
    s_lshl_b32 s51, s51, 3
    s_add_u32 s28, s51, s5
    s_mul_i32 s24, s20, 5120
    v_lshl_add_u32 v{T}, v207, 4, s24
    v_lshrrev_b32 v{T+1}, 4, v207
    v_lshlrev_b32 v{T+1}, 3, v{T+1}
    v_bfe_u32 v{T+2}, v207, 2, 2
    v_add_u32 v{T+1}, v{T+1}, v{T+2}
    v_mul_u32_u24 v{T+1}, 1280, v{T+1}
    v_and_b32 v{T+2}, 3, v207
    v_lshl_add_u32 v{T+1}, v{T+2}, 3, v{T+1}
    s_mul_i32 s3, s20, 160
    v_add_u32 v{T+1}, s3, v{T+1}
    s_mul_i32 s3, s20, {74*5120}
    v_lshl_add_u32 v{T+2}, v207, 4, s3
    v_add_u32 v{T+3}, 4096, v{T}
    v_add_u32 v{T+4}, 4096, v{T+2}
    s_waitcnt lgkmcnt(0)""")
    srd(A,4,48,WP_BYTES,WP_OFF)
    def issue(i):
        A(f"""s_add_u32 s27, s28, {16*i}
        s_cmp_ge_u32 s27, 54
        s_cselect_b32 s12, s42, s44
        s_cselect_b32 s13, s43, s45
        s_mov_b32 s14, {1728*1280}
        s_cselect_b32 s14, {640*1280}, s14
        s_mov_b32 s15, 0x20000
        s_cselect_b32 s3, 54, 0
        s_sub_u32 s3, s27, s3
        s_add_u32 m0, s24, {(i%3)*40960}
        s_mul_i32 s31, s3, {32*1280}""")
        for j in range(4): A(f"buffer_load_dwordx4 v{T}, s[12:15], s31 offen offset:{1024*j} lds")
        A(f"s_add_u32 m0, s24, {(i%3)*40960+4096}\ns_nop 0\nbuffer_load_dwordx4 v{T+3}, s[12:15], s31 offen lds")
    for i in range(3): issue(i)
    rowload(A); A("s_waitcnt vmcnt(0)"); rowstat(A); nonce_get(A,'P',U,-1); A("s_waitcnt vmcnt(0)\ns_barrier"); flagset(A,'P')
    A(f"v_add_u32 v{T+5}, {2*40960}, v{T+1}")
    for i in range(5):
        if i>=3: A(f"s_waitcnt vmcnt({15 if i==3 else 10})\ns_barrier")
        for t in range(5):
            for e in range(2): A(f"ds_read_b64_tr_b16 {vr(20*(i&1)+4*t+2*e,2)}, v{T+5 if i%3==2 else T+1} offset:{(i%3%2)*40960+e*4*1280+t*32}")
        A("s_waitcnt lgkmcnt(0)")
        if i<2: A("s_barrier"); issue(i+3)
        A(f"s_add_u32 s27, s28, {16*i}\ns_mul_i32 s30, s27, 5120\ns_cmp_lt_u32 s27, 74\ns_cselect_b32 s30, s30, 0x40000000")
        for t in range(4): A(f"buffer_store_dwordx4 {vr(20*(i&1)+4*t,4)}, v{T+2}, s[4:7], s30 offen offset:{1024*t}{SM}")
        A(f"buffer_store_dwordx4 {vr(20*(i&1)+16,4)}, v{T+4}, s[4:7], s30 offen{SM}")

def rowload(A):
    A(f"""s_mul_i32 s26, s73, 1280
    v_mul_u32_u24 v{XS+5}, 20, v207
    buffer_load_dwordx4 {vr(XS,4)}, v{XS+5}, s[8:11], s26 offen
    buffer_load_dword v{XS+4}, v{XS+5}, s[8:11], s26 offen offset:16""")
def rowstat(A):
    S=XS+6; Q=XS+7
    for i in range(5):
        A(f"v_lshlrev_b32 v{U}, 16, v{XS+i}\nv_and_b32 v{U+1}, s32, v{XS+i}")
        if i==0: A(f"v_add_f32 v{S}, v{U}, v{U+1}\nv_mul_f32 v{Q}, v{U}, v{U}\nv_fmac_f32 v{Q}, v{U+1}, v{U+1}")
        else: A(f"v_add_f32 v{S}, v{S}, v{U}\nv_fmac_f32 v{Q}, v{U}, v{U}\nv_add_f32 v{S}, v{S}, v{U+1}\nv_fmac_f32 v{Q}, v{U+1}, v{U+1}")
    for d in ["row_shr:1","row_shr:2","row_shr:4","row_shr:8","row_bcast:15 row_mask:0xa","row_bcast:31 row_mask:0xc"]:
        bc = " bound_ctrl:0" if "shr" in d else ""
        A(f"s_nop 1\nv_add_f32_dpp v{S}, v{S}, v{S} {d}{bc}\nv_add_f32_dpp v{Q}, v{Q}, v{Q} {d}{bc}")
    A(f"""v_mul_f32 v{S}, {hx(-1/640)}, v{S}
    v_mul_f32 v{Q}, {hx(1/640)}, v{Q}
    v_fma_f32 v{Q}, -v{S}, v{S}, v{Q}
    v_max_f32 v{Q}, 0, v{Q}
    v_add_f32 v{Q}, {hx(1e-5)}, v{Q}
    v_rsq_f32 v{Q}, v{Q}
    v_cmp_eq_u32 vcc, 63, v207
    v_mov_b32 v{U}, 0x40000000
    s_lshl_b32 s26, s73, 3
    v_cndmask_b32 v{U}, v{U}, 0, vcc
    buffer_store_dwordx2 {vr(S,2)}, v{U}, s[64:67], s26 offen sc1""")
def flagset(A,P): flag_put(A,U,207,72,FL_OFF)
def flagpoll(A,P):
    A(f"""s_cmp_lg_u32 s20, 0
    s_cbranch_scc1 FP{P}_done
    v_and_b32 v{U}, 7, v207
    s_and_b32 s26, s72, 31
    v_lshl_add_u32 v{U}, v{U}, 5, s26
    s_and_b32 s26, s72, 0xe0
    v_add_u32 v{U+1}, s26, v207
    v_cmp_gt_u32 vcc, 32, v207
    s_nop 1
    v_cndmask_b32 v{U}, v{U}, v{U+1}, vcc""")
    flag_wait(A,P,U,FL_OFF)
```

```python
from common import *
PB=int(os.environ.get('PB','0'))
def st(i): return f's_memrealtime s[{84+2*i}:{85+2*i}]\n' if (STAMP and PB) else ''
LM=os.environ.get('LM','sc1'); LN=251; FA_OFF=FL_OFF+32768; FO_OFF=FL_OFF+65536; CNT=73728; RED=81920
def att_ids(A):
    T=230
    A(f"""
    s_sub_u32 s23, s20, 4
    s_and_b32 s38, s2, 7
    s_lshr_b32 s39, s2, 3
    s_and_b32 s42, s39, 1
    s_lshl_b32 s21, s38, 1
    s_add_u32 s21, s21, s42
    s_lshr_b32 s22, s39, 1
    s_lshr_b32 s38, s21, 2
    v_and_b32 v{T}, 3, v{LN}
    v_min_u32 v{T}, 2, v{T}
    v_lshl_add_u32 v{T}, v{T}, 2, s38
    s_mov_b32 s39, {(2**32+2)//3}
    v_mul_hi_u32 v{T+1}, v{T}, s39
    v_mul_u32_u24 v{T+2}, 5, v{T+1}
    v_add_u32 v{T}, v{T}, v{T+2}
    s_lshr_b32 s39, s22, 1
    s_sub_u32 s42, s39, 1
    s_max_i32 s42, s42, 0
    s_lshl_b32 s39, s39, 5
    s_lshl_b32 s42, s42, 5
    v_add_u32 v{T+1}, s42, v{T}
    v_add_u32 v{T}, s39, v{T}
    v_cmp_gt_u32 vcc, 32, v{LN}
    s_nop 1
    v_cndmask_b32 v{T}, v{T+1}, v{T}, vcc""")
def att_kv(A,P):
    QF=214; T=230
    A(f"""{st(1)}s_lshr_b32 s38, s23, 1
    s_and_b32 s39, s23, 1
    s_lshl_b32 s39, s39, 5
    s_lshl_b32 s42, s21, 1
    s_add_u32 s38, s38, s42
    s_add_u32 s38, s38, s39
    s_add_u32 s38, s38, 32
    s_mul_i32 s38, s38, {QKV_PLANE}
    s_add_u32 s8, s48, s38
    s_addc_u32 s9, s49, 0
    s_mov_b32 s10, {QKV_PLANE}
    s_mov_b32 s11, 0x20000
    s_mul_i32 s38, s42, {QKV_PLANE}
    s_add_u32 s12, s48, s38
    s_addc_u32 s13, s49, 0
    s_mov_b32 s14, {2*QKV_PLANE}
    s_mov_b32 s15, 0x20000
    s_mul_i32 s27, s22, 6144
    s_sub_u32 s27, s27, 12288
    s_mul_i32 s28, s23, 18432
    v_lshlrev_b32 v{T}, 4, v{LN}
    s_mov_b32 s29, 0
    ATT_dma{P}:
    s_cmp_lt_i32 s27, 0
    s_cselect_b32 s30, 0x40000000, s27
    s_mov_b32 m0, s28
    s_add_u32 s27, s27, 3072
    s_add_u32 s28, s28, 3072
    buffer_load_dwordx4 v{T}, s[8:11], s30 offen sc1 lds
    buffer_load_dwordx4 v{T}, s[8:11], s30 offen offset:1024 sc1 lds
    buffer_load_dwordx4 v{T}, s[8:11], s30 offen offset:2048 sc1 lds
    s_add_u32 s29, s29, 1
    s_cmp_lt_u32 s29, 6
    s_cbranch_scc1 ATT_dma{P}
    s_lshl_b32 s25, s23, 5
    s_lshl_b32 s26, s22, 7
    s_add_u32 s26, s26, s25
    v_and_b32 v{T+1}, 31, v{LN}
    v_lshrrev_b32 v{T+2}, 5, v{LN}
    v_add_u32 v{T+3}, s26, v{T+1}
    v_mul_u32_u24 v{T+4}, 48, v{T+3}
    v_lshlrev_b32 v{T+5}, 30, v{T+2}
    v_add3_u32 v{T+5}, v{T+5}, v{T+4}, 32
    v_lshl_add_u32 v{T+4}, v{T+2}, 4, v{T+4}
    s_mov_b32 s30, {QKV_PLANE}
    buffer_load_dwordx4 {vr(QF,4)}, v{T+4}, s[12:15], 0 offen sc1
    buffer_load_dwordx2 {vr(QF+4,2)}, v{T+5}, s[12:15], 0 offen sc1
    buffer_load_dwordx4 {vr(QF+6,4)}, v{T+4}, s[12:15], s30 offen sc1
    buffer_load_dwordx2 {vr(QF+10,2)}, v{T+5}, s[12:15], s30 offen sc1""")
def early_poll(A):
    T=230
    A(f"s_cmp_lt_u32 s20, 4\ns_cbranch_scc1 EP_a\nv_mov_b32 v{LN}, v207"); att_ids(A)
    A(f"v_lshlrev_b32 v{T+1}, 7, v{T}\ns_mov_b32 s83, {FA_OFF}\nbuffer_load_dword v{T+2}, v{T+1}, s[64:67], s83 offen sc1\nEP_a:")
def early_kv(A):
    T=230
    A(f"s_cmp_lt_u32 s20, 4\ns_cbranch_scc1 EP_b\ns_waitcnt vmcnt(1)\nv_cmp_ne_u32 vcc, s82, v{T+2}\ns_cbranch_vccnz EP_b")
    att_kv(A,'b'); A("s_mov_b32 s44, 1\nEP_b:")
def attn(A):
    S=0; KF=144; O=198; QF=214; HP=226; T=230
    A(f"""ATT:
    s_setprio 3
    s_cmp_eq_u32 s44, 1
    s_cbranch_scc1 ATT_kvdone""")
    att_ids(A); flag_wait(A,'Q2',T,FA_OFF); att_kv(A,'a')
    A("ATT_kvdone:")
    srd(A,4,48,HO_BYTES,HO_OFF)
    A(f"""v_lshlrev_b32 v{T+6}, 2, v{T+2}
    v_sub_u32 v{T+6}, v{T+6}, v{T+1}
    v_add_u32 v{T+16}, 16, v{T+6}
    v_mov_b32 v{T+7}, 0xf149f2ca
    v_mov_b32 v{T+18}, 0x3f803f80
    v_mov_b32 v{T+19}, 0x3f803f80
    v_cmp_gt_u32 vcc, 32, v{LN}
    v_add_u32 v{T+8}, s25, v{T+1}
    v_mul_u32_u24 v{T+8}, 48, v{T+8}
    v_add_u32 v{T+9}, 32, v{T+8}
    v_lshl_add_u32 v{T+8}, v{T+2}, 4, v{T+8}
    v_bfe_u32 v{T+10}, v{LN}, 2, 2
    v_lshl_add_u32 v{T+10}, v{T+2}, 2, v{T+10}
    v_add_u32 v{T+10}, s25, v{T+10}
    v_mul_u32_u24 v{T+10}, 48, v{T+10}
    v_bfe_u32 v{T+11}, v{LN}, 4, 1
    v_and_b32 v{T+12}, 3, v{LN}
    v_lshl_add_u32 v{T+11}, v{T+11}, 2, v{T+12}
    v_lshlrev_b32 v{T+11}, 2, v{T+11}
    s_mov_b32 s30, 0x55543120
    s_mov_b32 s31, 0x55504231
    v_lshrrev_b32 v{T+12}, v{T+11}, s30
    v_lshrrev_b32 v{T+11}, v{T+11}, s31
    v_and_b32 v{T+12}, 15, v{T+12}
    v_and_b32 v{T+11}, 15, v{T+11}
    v_add_u32 v{T+10}, 18432, v{T+10}
    v_lshl_add_u32 v{T+17}, v{T+11}, 3, v{T+10}
    v_add_u32 v{T+17}, 36864, v{T+17}
    v_lshl_add_u32 v{T+10}, v{T+12}, 3, v{T+10}
    v_lshrrev_b32 v{T+4}, 4, v{T+3}
    v_mul_u32_u24 v{T+4}, {74*1024}, v{T+4}
    v_and_b32 v{T+3}, 15, v{T+3}
    v_lshl_add_u32 v{T+4}, v{T+3}, 4, v{T+4}
    s_mul_i32 s34, s21, 1280
    s_add_u32 s34, s34, {54*1024}
    v_add_u32 v{T+4}, s34, v{T+4}
    v_lshl_add_u32 v{T+3}, v{T+2}, 8, v{T+4}
    v_lshlrev_b32 v{T+5}, 30, v{T+2}
    v_add_u32 v{T+5}, v{T+5}, v{T+4}
    s_lshl_b32 s31, s22, 2
    s_add_u32 s31, s31, s23
    s_sub_i32 s31, 8, s31
    v_mov_b32 v{T+12}, {CNT}
    v_mov_b32 v{T+13}, 1
    s_waitcnt vmcnt(0)
    s_mov_b64 exec, 1
    ds_add_u32 v{T+12}, v{T+13}
    s_mov_b64 exec, -1
    ATT_sp:
    ds_read_b32 v{T+13}, v{T+12}
    s_waitcnt lgkmcnt(0)
    v_readfirstlane_b32 s3, v{T+13}
    s_cmp_lt_u32 s3, 4
    s_cbranch_scc1 ATT_sp
    s_mov_b32 s35, 0
    {st(2)}s_waitcnt lgkmcnt(0)
    ATT_u:""")
    for t in range(7): A(f"ds_read_b128 {vr(KF+6*t,4)}, v{T+8} offset:{t*1536}\nds_read_b64 {vr(KF+6*t+4,2)}, v{T+9} offset:{t*1536}")
    def cmp(r):
        c=8*(r>>2)+(r&3)
        return f"v_cmp_lt_i32 {sr(36+2*(r%3),2)}, {-c if c<16 else 16-c}, v{T+6 if c<16 else T+16}"
    A(cmp(0)); A(cmp(1))
    for r in range(16):
        A(cmp(r+2) if r+2<16 else "s_nop 0")
        A(f"v_cndmask_b32 v{S+r}, v{T+7}, 0, {sr(36+2*(r%3),2)}\nv_cndmask_b32 v{S+128+r}, 0, v{T+7}, {sr(36+2*(r%3),2)}")
    VF=KF; P=KF+32; M=T+12
    A(f"v_mov_b32 v{HP+1}, 0\nv_mov_b32 v{HP}, 0xf149\nv_cndmask_b32 v{HP}, 0, v{HP}, vcc")
    def mx(t):
        return [(f"v_max_f32 v{M+(p&3)}, v{S+2*p}, v{S+2*p+1}" if t==0 and p<4 else f"v_max3_f32 v{M+(p&3)}, v{S+16*t+2*p}, v{S+16*t+2*p+1}, v{M+(p&3)}") for p in range(8)]
    for t in range(7,9): A(f"ds_read_b128 {vr(KF+6*t,4)}, v{T+8} offset:{t*1536}\nds_read_b64 {vr(KF+6*t+4,2)}, v{T+9} offset:{t*1536}")
    for t in range(13):
        if t<9:
            A(f"s_waitcnt lgkmcnt({min(15,16-2*t)})")
            c = vr(S+16*t,16) if t in (0,8) else "0"
            A(f"v_mfma_f32_32x32x16_bf16 {vr(S+16*t,16)}, {vr(KF+6*t,4)}, {vr(QF,4)}, {c}")
        if t==4: A("s_nop 3")
        if t>=4:
            for x in mx(t-4)[:4]: A(x)
        if 2<=t<11:
            u=t-2
            A(f"v_mfma_f32_32x32x8_bf16 {vr(S+16*u,16)}, {vr(KF+6*u+4,2)}, {vr(QF+4,2)}, {vr(S+16*u,16)}")
            if u<8: A(f"s_cmp_le_i32 s31, {u}\ns_cbranch_scc1 ATT_v{t}\nv_mfma_f32_32x32x8_bf16 {vr(S+16*u,16)}, {vr(T+18,2)}, {vr(HP,2)}, {vr(S+16*u,16)}\ns_nop 7\nATT_v{t}:")
        if t>=11: A("s_nop 5")
        if t>=4:
            for x in mx(t-4)[4:]: A(x)
    def vread(t):
        b=VF+8*(t%4)
        return [f"ds_read_b64_tr_b16 {vr(b+4*u+2*z,2)}, v{T+10} offset:{t*1536+(16*u+8*z)*48}" for u in range(2) for z in range(2)]
    for t in range(3):
        for x in vread(t): A(x)
    A(f"""v_max3_f32 v{M}, v{M}, v{M+1}, v{M+2}
    v_max_f32 v{M}, v{M}, v{M+3}
    v_mov_b32 v{M+1}, v{M}
    s_nop 1
    v_permlane32_swap_b32 v{M}, v{M+1}
    s_nop 1
    v_max_f32 v{M}, v{M}, v{M+1}
    v_cvt_pk_bf16_f32 v{M+1}, v{M}, v{M}
    v_and_b32 v{M+1}, 0xffff0000, v{M+1}
    v_sub_f32 v{M+2}, v{M}, v{M+1}
    v_cvt_pk_bf16_f32 v{M+2}, -v{M+1}, -v{M+2}
    v_mov_b32 v{M+3}, 0
    v_cndmask_b32 v{M+2}, 0, v{M+2}, vcc
    s_nop 1""")
    def sub(t): return f"v_mfma_f32_32x32x8_bf16 {vr(S+16*t,16)}, {vr(T+18,2)}, {vr(M+2,2)}, {vr(S+16*t,16)}"
    A(sub(0)); A(sub(1)); A("s_nop 7\ns_nop 2")
    for t in range(9):
        a=S+16*t; Pb=P+8*(t&1)
        for i in range(16):
            A(f"v_exp_f32 v{a+i}, v{a+i}")
            if i==3 and t+2<9: A(sub(t+2))
        if t+3<9:
            for x in vread(t+3): A(x)
        else: A("s_nop 0")
        for p in range(8): A(f"v_cvt_pk_bf16_f32 v{Pb+p}, v{a+2*p}, v{a+2*p+1}")
        A(f"s_waitcnt lgkmcnt({4*min(3,8-t)})\ns_nop 0")
        b=VF+8*(t%4)
        for u in range(2): A(f"v_mfma_f32_32x32x16_bf16 {vr(O,16)}, {vr(b+4*u,4)}, {vr(Pb+4*u,4)}, {vr(O,16) if t or u else 0}")
    A(f"s_nop 7\ns_nop 4\nv_rcp_f32 v{M}, v{O+12}\nv_mov_b32 v{HP}, v{HP+2}\nv_mov_b32 v{HP+1}, v{HP+3}")
    for p in range(6): A(f"v_pk_mul_f32 {vr(O+2*p,2)}, {vr(O+2*p,2)}, {vr(M,2)} op_sel_hi:[1,0]")
    for p in range(4): A(f"v_cvt_pk_bf16_f32 v{P+16+p}, v{O+2*p}, v{O+2*p+1}")
    for p in range(2): A(f"v_cvt_pk_bf16_f32 v{HP+2+p}, v{O+8+2*p}, v{O+9+2*p}")
    A(f"buffer_store_dwordx4 {vr(P+16,4)}, v{T+3}, s[4:7], 0 offen sc1")
    for i in range(6): A(f"v_mov_b32 v{QF+i}, v{QF+6+i}")
    A(f"""v_add_u32 v{T+3}, 768, v{T+3}
    v_add_u32 v{T+8}, 36864, v{T+8}
    v_add_u32 v{T+9}, 36864, v{T+9}
    v_mov_b32 v{T+10}, v{T+17}
    s_add_u32 s35, s35, 1
    s_cmp_lt_u32 s35, 2
    s_cbranch_scc1 ATT_u
    {st(3)}buffer_store_dwordx4 {vr(HP,4)}, v{T+5}, s[4:7], 0 offen offset:512 sc1
    v_mov_b32 v{T+12}, {CNT}
    v_mov_b32 v{T+13}, 1
    s_waitcnt vmcnt(0)
    {st(4)}""")
    if PB: stamp_out(A,0,LN,T+14)
    A(f"""s_mov_b64 exec, 1
    ds_add_rtn_u32 v{T+13}, v{T+12}, v{T+13} offset:4
    s_mov_b64 exec, -1
    s_waitcnt lgkmcnt(0)
    v_readfirstlane_b32 s3, v{T+13}
    s_cmp_lg_u32 s3, 3
    s_cbranch_scc1 K1_exit
    s_lshl_b32 s3, s22, 4
    s_add_u32 s3, s3, s21
    s_mov_b32 s20, 4""")
    flag_put(A,T,LN,3,FO_OFF,wave=4)
    A(f"v_and_b32 v{T}, 15, v{LN}\ns_lshr_b32 s3, s50, 1\ns_lshl_b32 s3, s3, 4\nv_add_u32 v{T}, s3, v{T}")
    flag_wait(A,'O2',T,FO_OFF)
    A(f"v_mov_b32 v{T+13}, 1\nds_write_b32 v{T+12}, v{T+13} offset:8\ns_waitcnt lgkmcnt(0)\ns_endpgm")
def gen(A):
    ACC=0; F=80; XR=224; VA=234; VW=238; T=240; NSET=4
    A(f"""s_mov_b32 s44, 0
PHB:
    s_load_dwordx2 s[46:47], s[0:1], 56
    v_mov_b32 v{LN}, v207
    v_mov_b32 v{T}, {CNT}
    v_mov_b32 v{T+2}, 0
    v_mov_b32 v{T+3}, 0
    s_and_b32 s3, s2, 7
    s_lshr_b32 s4, s2, 3
    s_lshr_b32 s5, s3, 1
    s_lshl_b32 s5, s5, 3
    s_and_b32 s6, s4, 7
    s_add_u32 s50, s5, s6
    s_and_b32 s3, s3, 1
    s_lshl_b32 s3, s3, 2
    s_lshr_b32 s4, s4, 3
    s_add_u32 s51, s3, s4
    s_waitcnt vmcnt(0) lgkmcnt(0)
    s_barrier
    ds_write_b64 v{T}, {vr(T+2,2)}
    ds_write_b32 v{T}, v{T+2} offset:8""")
    flag_put(A,T+4,LN,72,FA_OFF)
    A("s_waitcnt lgkmcnt(0)\ns_barrier\ns_cmp_ge_u32 s20, 4\ns_cbranch_scc1 ATT")
    if not PB: stamp(A,3)
    A(f"""s_lshr_b32 s3, s50, 2
    s_lshl_b32 s3, s3, 5
    v_add_u32 v{T}, s3, v{LN}
    v_and_b32 v{T+1}, 7, v{LN}
    v_lshlrev_b32 v{T+1}, 5, v{T+1}
    v_and_b32 v{T+2}, 8, v{LN}
    v_add3_u32 v{T+1}, v{T+1}, v{T+2}, 23
    v_cmp_gt_u32 vcc, 32, v{LN}
    s_lshl_b32 s21, s50, 6
    s_mul_i32 s22, s51, 160
    v_cndmask_b32 v{T}, v{T+1}, v{T}, vcc
    s_mul_i32 s27, s20, 14
    s_cmp_eq_u32 s20, 3
    s_cselect_b32 s27, 41, s27
    s_mul_i32 s5, s50, {4*74*1024}
    s_mul_i32 s3, s51, {74*5120}
    v_lshl_add_u32 v{VA}, v{LN}, 4, s5
    v_add_u32 v{VA+1}, {74*1024}, v{VA}
    v_add_u32 v{VA+2}, {2*74*1024}, v{VA}
    v_add_u32 v{VA+3}, {3*74*1024}, v{VA}
    v_lshl_add_u32 v{VW}, v{LN}, 4, s3
    v_add_u32 v{VW+1}, 4096, v{VW}
    s_lshl_b32 s30, s27, 10
    s_mul_i32 s31, s27, 5120
    v_and_b32 v{T+5}, 15, v{LN}
    v_lshrrev_b32 v{T+4}, 4, v{LN}
    s_lshl_b32 s3, s20, 4
    s_add_u32 s3, s3, s21
    v_add_u32 v{T+5}, s3, v{T+5}
    v_mul_u32_u24 v{T+5}, 1280, v{T+5}
    v_lshl_add_u32 v{T+5}, v{T+4}, 3, v{T+5}
    v_add_u32 v{T+8}, s22, v{T+5}""")
    srd(A,4,40,2621440); srd(A,8,48,HO_BYTES,HO_OFF); srd(A,12,48,WP_BYTES,WP_OFF); srd(A,16,46,2621440)
    for t in range(5): A(f"buffer_load_dwordx2 {vr(XR+2*t,2)}, v{T+8}, s[4:7], 0 offen offset:{32*t}")
    flag_wait(A,'H2',T,FA_OFF)
    stamp(A,1 if PB else 4)
    def ldw(i):
        b=F+36*(i%NSET)
        L=[f"buffer_load_dwordx4 {vr(b+16+4*t,4)}, v{VW+(t>>2)}, s[12:15], s31 offen offset:{(t&3)*1024} {LM}" for t in range(5)]
        if i==14: L[0]="s_mul_i32 s3, s20, 5\ns_add_u32 s3, s3, 54\ns_lshl_b32 s30, s3, 10\ns_mul_i32 s31, s3, 5120\n"+L[0]
        L[-1]+="\ns_add_u32 s31, s31, 5120"
        return L
    def lda(i):
        b=F+36*(i%NSET)
        L=[f"buffer_load_dwordx4 {vr(b+4*j,4)}, v{VA+j}, s[8:11], s30 offen {LM if i<14 else 'sc1'}" for j in range(4)]
        if i==13: L[0]="s_cmp_ge_u32 s20, 2\ns_cselect_b32 s30, 0x40000000, s30\n"+L[0]
        L[-1]+="\ns_add_u32 s30, s30, 1024"
        return L
    def ld(i): return ldw(i)+(lda(i) if i not in (14,15,16) else [])
    def mf(i):
        b=F+36*(i%NSET)
        return [f"v_mfma_f32_16x16x32_bf16 {vr(ACC+4*(5*j+t),4)}, {vr(b+16+4*t,4)}, {vr(b+4*j,4)}, {vr(ACC+4*(5*j+t),4) if i else 0}" for t in range(5) for j in range(4)]
    for i in range(NSET-1):
        for x in ld(i): A(x)
    for i in range(19):
        nxt=i+NSET-1
        if i==14:
            A(f"""{st(2)}v_mov_b32 v{T}, {CNT}
            s_mov_b32 s26, 0x1000000
            GO_sp:
            ds_read_b32 v{T+1}, v{T} offset:8
            s_sub_u32 s26, s26, 1
            s_cbranch_scc1 GO_dn
            s_waitcnt lgkmcnt(0)
            v_readfirstlane_b32 s3, v{T+1}
            s_cmp_eq_u32 s3, 0
            s_cbranch_scc1 GO_sp
            GO_dn:
            {st(3)}""")
            for x in lda(14)+lda(15)+lda(16): A(x)
        A(f"s_waitcnt vmcnt({ {12:14,13:10,14:8,15:13}.get(i, 9*(min(19,i+NSET-1)-1-i)) })")
        for x in interleave(mf(i), ld(nxt) if nxt<19 else []): A(x)
    A(f"""{st(4)}s_mul_i32 s3, s20, 20480
    s_add_u32 s3, s3, {RED}
    v_lshl_add_u32 v{T}, v{LN}, 4, s3
    s_mul_i32 s3, s20, 5120
    s_add_u32 s3, s3, {RED}
    v_lshl_add_u32 v{T+1}, v{LN}, 4, s3
    v_add_u32 v{T+2}, 40960, v{T+1}
    s_nop 4""")
    for i in range(20): A(f"ds_write_b128 v{T}, {vr(ACC+4*i,4)} offset:{i*1024}")
    A("s_waitcnt lgkmcnt(0)\ns_barrier")
    def rr(t):
        for w in range(4): A(f"ds_read_b128 {vr(16*t+4*w,4)}, v{T+1+(w>>1)} offset:{(w&1)*20480+t*1024}")
    rr(0); rr(1); rr(2)
    for t in range(5):
        b=16*t
        A(f"s_waitcnt lgkmcnt({[8,8,8,4,0][t]})")
        if t<2: rr(t+3)
        A(f"""v_lshlrev_b32 v{F}, 16, v{XR+2*t}
        v_and_b32 v{F+1}, 0xffff0000, v{XR+2*t}
        v_lshlrev_b32 v{F+2}, 16, v{XR+2*t+1}
        v_and_b32 v{F+3}, 0xffff0000, v{XR+2*t+1}""")
        for p in range(2):
            A(f"""v_pk_add_f32 {vr(b+2*p,2)}, {vr(b+2*p,2)}, {vr(b+4+2*p,2)}
            v_pk_add_f32 {vr(b+8+2*p,2)}, {vr(b+8+2*p,2)}, {vr(b+12+2*p,2)}
            v_pk_add_f32 {vr(b+2*p,2)}, {vr(b+2*p,2)}, {vr(F+2*p,2)}
            v_pk_add_f32 {vr(b+2*p,2)}, {vr(b+2*p,2)}, {vr(b+8+2*p,2)}""")
        A(f"v_cvt_pk_bf16_f32 v{b+4}, v{b}, v{b+1}\nv_cvt_pk_bf16_f32 v{b+5}, v{b+2}, v{b+3}")
        A(f"buffer_store_dwordx2 {vr(b+4,2)}, v{T+8}, s[16:19], 0 offen offset:{32*t}")
    stamp_out(A,0,LN,T+9)
    A("s_endpgm")
    attn(A)
```

```python
from common import *
import math, k23
SM=' sc1'
NS=5; XW=3*4096; WB=8*XW; WS=12416; CSB=WB+NS*WS; K1_LDS=163840
ACC=0; FA=96; FB=124; CSR=152; VSUM=158; VSQ=159; VCS=160
VX=184; VW=165; VXR=188; VWR=168; VCR=169; T=170; U=192; PF=200; VS2=163; VQ2=164
XS=152; WL=208; END=228
K1_VG=252
def variant(A, NT, gu):
    P='G' if gu else 'Q'
    pitch=3456 if gu else 3840
    RD=NT*1024+128
    A(f"""
    s_mul_i32 s24, s20, {XW}
    s_mul_i32 s25, s20, {NT*128}
    s_add_u32 s25, s25, {WB}
    v_lshrrev_b32 v{T}, 3, v207
    v_bfe_u32 v{T+1}, v207, 1, 2
    v_and_b32 v{T+2}, 1, v207
    s_lshl_b32 s26, s20, 2
    v_add_u32 v{T+1}, s26, v{T+1}
    v_mul_u32_u24 v{T+1}, {pitch}, v{T+1}
    v_lshlrev_b32 v{T}, 5, v{T}
    v_lshl_add_u32 v{T}, v{T+2}, 4, v{T}
    s_lshl_b32 s26, s22, 1
    v_add3_u32 v{VW}, v{T}, v{T+1}, s26
    v_lshrrev_b32 v{T}, 5, v207
    v_bfe_u32 v{T+1}, v207, 4, 1
    v_and_b32 v{T+2}, 1, v207
    v_bfe_u32 v{T+3}, v207, 2, 2
    v_bfe_u32 v{T+4}, v207, 1, 1
    v_mul_u32_u24 v{T+5}, {RD}, v{T+1 if gu else T+2}
    v_lshl_add_u32 v{T+5}, v{T+2 if gu else T+1}, 4, v{T+5}
    v_lshl_add_u32 v{T+5}, v{T+3}, 5, v{T+5}
    v_lshl_add_u32 v{T+5}, v{T+4}, 3, v{T+5}
    v_mul_u32_u24 v{T+6}, {2*NT*128}, v{T}
    v_add_u32 v{VWR}, {WB}, v{T+5}
    v_add_u32 v{VWR}, v{T+6}, v{VWR}
    s_lshr_b32 s56, s20, 2
    s_mul_i32 s26, s56, {3*128 if gu else 0}
    v_add_u32 v{VWR}, s26, v{VWR}
    """)
    ehi = 0xffff if gu else 0xff
    def dmax(g):
        n=g>>1; j0=2*(g&1)
        return [f"s_add_u32 m0, s24, {(n%3)*4096+(j0+j)*1024}\ns_movk_i32 s30, {n*128}\nbuffer_load_dwordx4 v{VX+j0+j}, s[8:11], s30 offen lds" for j in range(2)]
    def dmaw(st):
        sl=st%NS
        return [f"s_add_u32 m0, s25, {sl*WS+R*RD}\ns_mov_b32 s31, {st*32*pitch}\ns_mov_b32 exec_hi, {ehi}\nbuffer_load_dwordx4 v{VW}, s[{12+4*R}:{15+4*R}], s31 offen lds\ns_mov_b32 exec_hi, -1" for R in range(2)]
    for d in dmaw(0)+dmax(0)+dmax(1): A(d)
    A('s_barrier')
    for d in dmaw(1): A(d)
    A0=A; A=Asm()
    nonce_put(A,T)
    rowload(A)
    NC=2*NT
    A(f"""v_and_b32 v{T}, 15, v207
    v_lshrrev_b32 v{T+1}, 4, v207
    s_and_b32 s3, s20, 3
    s_lshl_b32 s26, s3, 2
    s_mul_i32 s33, s57, 80
    s_add_u32 s26, s26, s33
    v_add_u32 v{T+2}, s26, v{T+1}
    v_mul_u32_u24 v{T+2}, {pitch}, v{T+2}
    v_lshl_add_u32 v{T+2}, v{T}, 4, v{T+2}
    s_lshl_b32 s26, s22, 1
    v_add_u32 v{T+2}, s26, v{T+2}
    v_cmp_gt_u32 vcc, {NC}, v{T}
    v_mov_b32 v{T+3}, 0x40000000
    s_cmp_eq_u32 s56, 0
    s_cselect_b32 s60, s12, s16
    s_cselect_b32 s61, s13, s17
    s_cselect_b32 s62, s14, s18
    s_mov_b32 s63, 0x20000
    v_cndmask_b32 v{T+2}, v{T+3}, v{T+2}, vcc""")
    for i in range(5): A(f"s_mov_b32 s26, {16*i*pitch}\nbuffer_load_dwordx4 {vr(WL+4*i,4)}, v{T+2}, s[60:63], s26 offen")
    A(f"""v_lshrrev_b32 v{T+2}, 1, v{T}
    v_and_b32 v{T}, 1, v{T}
    v_lshlrev_b32 v{T+2}, 7, v{T+2}
    v_lshl_add_u32 v{T+2}, v{T}, {4 if gu else 6}, v{T+2}
    v_lshrrev_b32 v{T}, 1, v{T+1}
    v_lshl_add_u32 v{T+2}, v{T}, 5, v{T+2}
    v_and_b32 v{T}, 1, v{T+1}
    v_lshl_add_u32 v{T+2}, v{T}, 3, v{T+2}
    s_lshl_b32 s26, s56, {6 if gu else 4}
    s_mul_i32 s3, s3, 768
    s_add_u32 s26, s26, s3
    s_add_u32 s26, s26, {CSB}
    v_add_u32 v{T+2}, s26, v{T+2}
    v_mov_b32 v{T+3}, {CSB+3072}
    v_cndmask_b32 v{VCR}, v{T+3}, v{T+2}, vcc
    s_mov_b32 s29, 0x3f803f80""")
    PL=A.L; A=A0
    NX=2 if gu else 1; NW_=3 if gu else 5
    def reads(F, st, ks):
        sl=st%NS; L=[]
        xs=[f"ds_read_b128 {vr(F+4*j,4)}, v{VXR+2*(st&1)+ks} offset:{((st>>1)%3)*4096+j*XW}" for j in range(NX)]
        for t in range(NW_):
            if t<NX: L.append(xs[t])
            for e in range(2):
                L.append(f"ds_read_b64_tr_b16 {vr(F+8+4*t+2*e,2)}, v{VWR} offset:{sl*WS+((4*ks+e)*NT+t)*128}")
        return L if 'noread' not in EXP else []
    def mf(F,z=False): return [f"v_mfma_f32_32x32x16_bf16 {vr(ACC+16*(NW_*j+t),16)}, {vr(F+8+4*t,4)}, {vr(F+4*j,4)}, {0 if z else vr(ACC+16*(NW_*j+t),16)}" for t in range(NW_) for j in range(NX)]
    def half(m, rd, extra):
        out=[]; per=(len(rd)+2)//3
        for i,x in enumerate(m):
            out.append(x)
            out+=rd[:per]; rd=rd[per:]
            if i>=2 and extra:
                n=(len(extra)+len(m)-1-i)//(len(m)-i); out+=extra[:n]; extra=extra[n:]
        return out+rd+extra
    SS=[int(x) for x in os.environ.get('SS','').split(',') if x]
    if 'skipdma' in EXP: dmax=lambda g: []; dmaw=lambda g: []
    if 'nomfma' in EXP: mf=lambda F,z=False: ["s_nop 0"]*(NX*NW_)
    log=['w0','w0','x0','x0','x1','x1','w1','w1']
    S0=6
    for st in range(20):
        need={f"w{st}",f"x{st&~1}",f"x{st|1}"}
        if st==S0: need.add('p')
        if st==19: need.add('q')
        if st==S0+3: need.add('n')
        if st==S0+5: need.add('s')
        last=max([i for i,x in enumerate(log) if x in need]+[-1])
        A(f"s_waitcnt vmcnt({min(63,len(log)-1-last)}) lgkmcnt(0)\ns_barrier")
        if st in SS: stamp(A,1+SS.index(st))
        dx=dmax(st+4) if st+4<20 else []; dw=dmaw(st+4) if st+4<20 else []
        ex=[]; ex2=[]
        if st==S0:
            B=Asm(); rowstat(B); ex=[l for l in B.L]
            for e in range(8):
                u=U+e
                for i in range(5):
                    r=WL+4*i+(e>>1); d=u if i==0 else T+(i&1)
                    ex.append(f"v_and_b32 v{d}, s32, v{r}" if e&1 else f"v_lshlrev_b32 v{d}, 16, v{r}")
                    if i: ex.append(f"v_add_f32 v{u}, v{u}, v{d}")
            ex.append("s_nop 1")
            ex+=[f"v_permlane32_swap_b32 v{U+i}, v{U+4+i}" for i in range(4)]+["s_nop 1"]
            ex+=[f"v_add_f32 v{U+i}, v{U+i}, v{U+4+i}" for i in range(4)]+["s_nop 1"]
            ex+=[f"v_permlane16_swap_b32 v{U+i}, v{U+2+i}" for i in range(2)]+["s_nop 1"]
            ex+=[f"v_add_f32 v{U+i}, v{U+i}, v{U+2+i}" for i in range(2)]
            ex.append(f"ds_write_b64 v{VCR}, {vr(U,2)}")
            n=(len(ex)+5)//6; parts=["\n".join(ex[i:i+n]) for i in range(0,len(ex),n)]
            ex=parts[:3]; ex2=parts[3:]
        if st==S0+1:
            ex=[f"""v_lshl_add_u32 v{U}, s20, 6, v207
            v_cmp_gt_u32 vcc, 192, v{U}
            v_lshlrev_b32 v{U}, 2, v{U}
            v_add_u32 v{U+1}, {CSB}, v{U}
            ds_read_b32 v{U+2}, v{U+1}
            ds_read_b32 v{U+3}, v{U+1} offset:768
            ds_read_b32 v{U+4}, v{U+1} offset:1536
            ds_read_b32 v{U+5}, v{U+1} offset:2304
            v_mov_b32 v{U+1}, 0x40000000
            s_lshl_b32 s26, s58, 3
            s_add_u32 s26, s26, s57
            s_mul_i32 s33, s26, 768
            s_add_u32 s33, s33, {CSP_OFF}
            v_cndmask_b32 v{U}, v{U+1}, v{U}, vcc"""]
            ex2=[f"""v_add_f32 v{U+2}, v{U+2}, v{U+3}
            v_add_f32 v{U+4}, v{U+4}, v{U+5}
            v_add_f32 v{U+2}, v{U+2}, v{U+4}
            buffer_store_dword v{U+2}, v{U}, s[64:67], s33 offen sc1"""]
        if st==S0+3:
            B=Asm(); B(f"v_readfirstlane_b32 s82, v{PF}\ns_cmp_lg_u32 s82, 0\ns_cbranch_scc1 NG{P}_done"); nonce_get(B,P,U,-1); ex=["\n".join(B.L)]
        if st==4:
            ex=[f"v_mov_b32 v{PF+1}, 0\nbuffer_load_dword v{PF}, v{PF+1}, s[68:71], 0 offen sc1"]; log+=['n']
        if st==S0+5:
            B=Asm(); flagset(B,P); ex=["\n".join(B.L)]; log+=['f']
        if st==15:
            B=Asm(); flagpoll(B,P); ex=["\n".join(B.L)]
        if st==16:
            ex=[f"""v_and_b32 v{U}, 31, v207
            v_add_u32 v{U}, s59, v{U}
            v_lshlrev_b32 v{U}, 3, v{U}
            s_mul_i32 s33, s58, {8*768}
            s_add_u32 s33, s33, {CSP_OFF}
            s_add_u32 s34, s33, {4*768}
            v_lshl_add_u32 v{U+1}, s20, 6, v207
            v_cmp_gt_u32 vcc, 192, v{U+1}
            v_lshlrev_b32 v{U+1}, 2, v{U+1}
            v_mov_b32 v{U+2}, 0x40000000
            v_add_u32 v{VCR}, {CSB}, v{U+1}
            v_mov_b32 v{U+3}, {CSB+3072}
            v_cndmask_b32 v{U+1}, v{U+2}, v{U+1}, vcc
            v_cndmask_b32 v{VCR}, v{U+3}, v{VCR}, vcc"""]
            for j in range(NX): ex.append(f"buffer_load_dwordx2 {vr(WL+4*j,2)}, v{U}, s[64:67], 0 offen offset:{256*j} sc1")
            for j in range(8): ex2.append(f"buffer_load_dword v{WL+8+j}, v{U+1}, s[64:67], s{33+(j>>2)} offen offset:{768*(j&3)} sc1")
            log+=['q']*(NX+8)
        if st==19:
            ex=[f"v_add_f32 v{WL+8+j}, v{WL+8+j}, v{WL+12+j}" for j in range(4)]+[f"v_add_f32 v{WL+8+j}, v{WL+8+j}, v{WL+10+j}" for j in range(2)]
            ex=["\n".join(ex+[f"v_add_f32 v{WL+8}, v{WL+8}, v{WL+9}",f"ds_write_b32 v{VCR}, v{WL+8}"])]
        if st==0:
            dx=dmax(2)+dmaw(2)+dmax(3)+dmaw(3); dw=dmax(4)+dmaw(4)
            log+=[f"{c}{k}" for k in (2,3,4) for c in "xxww"] if dx else []
        elif st==1:
            n=(len(PL)+3)//4; ex2=["\n".join(PL[i:i+n]) for i in range(0,len(PL),n)]
            log+=[f"x{st+4}"]*len(dx)+['p']*8+[f"w{st+4}"]*len(dw)
        elif st in (S0,S0+1): log+=[f"x{st+4}"]*len(dx)+['s']+[f"w{st+4}"]*len(dw)
        else: log+= [f"x{st+4}"]*len(dx)+[f"w{st+4}"]*len(dw)
        if st==0:
            for x in reads(FA,st,0)+dx: A(x)
        else:
            for x in half(mf(FB),reads(FA,st,0), ex+dx): A(x)
        A("s_waitcnt lgkmcnt(0)")
        for x in half(mf(FA,st==0),reads(FB,st,1), ex2+dw): A(x)
    A("s_waitcnt lgkmcnt(0)")
    for x in mf(FB): A(x)
    if not SS: stamp(A,1)
    A(f"""v_and_b32 v{T}, 31, v207
    v_lshrrev_b32 v{T+1}, 5, v207
    v_lshlrev_b32 v{T+2}, 4, v{T+1}
    s_mul_i32 s26, s56, {3*128 if gu else 0}
    s_add_u32 s26, s26, {CSB}
    v_add_u32 v{T+2}, s26, v{T+2}
    v_add_u32 v{T}, s59, v{T}
    s_waitcnt lgkmcnt(0)
    s_barrier
    """)
    if not gu: A(f"v_mul_f32 v{WL+1}, s23, v{WL+1}")
    C=FA
    def norm(t0,t1):
        for t in range(t0,t1):
            for g in range(4): A(f"ds_read_b128 {vr(C+16*(t-t0)+4*g,4)}, v{T+2} offset:{(t*32+8*g)*4}")
        n=(t1-t0)*4
        for t in range(t0,t1):
            for g in range(4):
                n-=1
                A(f"s_waitcnt lgkmcnt({n})")
                for j in range(NX):
                    for p in range(2):
                        a=ACC+16*(NW_*j+t)+4*g+2*p; c=C+16*(t-t0)+4*g+2*p
                        A(f"v_pk_fma_f32 {vr(a,2)}, {vr(c,2)}, {vr(WL+4*j,2)}, {vr(a,2)} op_sel_hi:[1,0,1]")
                    for p in range(2):
                        a=ACC+16*(NW_*j+t)+4*g+2*p
                        A(f"v_pk_mul_f32 {vr(a,2)}, {vr(a,2)}, {vr(WL+4*j,2)} op_sel:[0,1] op_sel_hi:[1,1]")
    norm(0,3)
    if not gu: norm(3,5)
    if gu:
        c0=-2*math.sqrt(2/math.pi)*math.log2(math.e); c1=c0*0.044715
        A(f"""v_lshrrev_b32 v{T+3}, 4, v{T}
        v_mul_u32_u24 v{T+3}, {74*1024}, v{T+3}
        v_and_b32 v{T}, 15, v{T}
        v_lshl_add_u32 v{T}, v{T}, 4, v{T+3}
        v_lshl_add_u32 v{T}, v{T+1}, 8, v{T}
        s_lshl_b32 s26, s22, 5
        s_mul_i32 s3, s56, 1536
        s_add_u32 s26, s26, s3
        s_mov_b32 s33, {2*74*1024}
        v_add_u32 v{T}, s26, v{T}
        s_mov_b32 s34, {hx(c1)}
        s_mov_b32 s36, 1.0
        v_mov_b32 v{T+10}, {hx(c0)}""")
        for t in range(NT):
            a=ACC+16*t; E=FA+16*(t&1); O=E+8
            for p in range(4): A(f"v_pk_mul_f32 {vr(E+2*p,2)}, {vr(a+2*p,2)}, {vr(a+2*p,2)}")
            for p in range(4): A(f"v_pk_fma_f32 {vr(E+2*p,2)}, {vr(E+2*p,2)}, s[34:35], {vr(T+10,2)} op_sel_hi:[1,0,0]")
            for p in range(4): A(f"v_pk_mul_f32 {vr(E+2*p,2)}, {vr(E+2*p,2)}, {vr(a+2*p,2)}")
            for i in range(8): A(f"v_exp_f32 v{E+i}, v{E+i}")
            for p in range(4): A(f"v_pk_mul_f32 {vr(a+2*p,2)}, {vr(a+2*p,2)}, {vr(a+8+2*p,2)}")
            for p in range(4): A(f"v_pk_add_f32 {vr(E+2*p,2)}, {vr(E+2*p,2)}, s[36:37] op_sel_hi:[1,0]")
            for i in range(8): A(f"v_rcp_f32 v{E+i}, v{E+i}")
            A("s_nop 0")
            for p in range(4): A(f"v_pk_mul_f32 {vr(a+2*p,2)}, {vr(a+2*p,2)}, {vr(E+2*p,2)}")
            for p in range(4): A(f"v_cvt_pk_bf16_f32 v{O+p}, v{a+2*p}, v{a+2*p+1}")
            if t==NT-1: k23.early_poll(A)
            A(f"buffer_store_dwordx4 {vr(O,4)}, v{T}, s[4:7], {'s33' if t>=3 else 0} offen offset:{512*(t%3)}{SM}")
    else:
        A(f"""v_and_b32 v{T}, 31, v207
        v_mul_u32_u24 v{T}, 48, v{T}
        s_mul_i32 s26, s20, 12288
        s_movk_i32 s33, 6144
        v_mad_u32_u24 v{T}, v{T+1}, s33, v{T}
        v_add_u32 v{T}, s26, v{T}
        v_lshl_add_u32 v{T+1}, v207, 4, s26
        s_mul_i32 s33, s27, {QKV_PLANE}
        s_mul_i32 s26, s59, 48
        s_add_u32 s33, s33, s26
        v_lshlrev_b32 v{T+3}, 4, v207
        v_add_u32 v{T+5}, {QKV_PLANE+512}, v{T+3}
        v_add_u32 v{T+4}, 1024, v{T+3}
        v_add_u32 v{T+6}, {QKV_PLANE-512}, v{T+3}
        v_cmp_gt_u32 vcc, 32, v207
        s_nop 1
        v_cndmask_b32 v{T+4}, v{T+6}, v{T+4}, vcc""")
        for hd in range(4):
            O=FA+12*hd
            for p in range(10): A(f"v_cvt_pk_bf16_f32 v{O+p}, v{ACC+20*hd+2*p}, v{ACC+20*hd+2*p+1}")
            A(f"v_mov_b32 v{O+10}, s29\nv_mov_b32 v{O+11}, s29")
            for p in range(3): A(f"ds_write_b128 v{T}, {vr(O+4*p,4)} offset:{hd*1536+16*p}")
        A("s_waitcnt lgkmcnt(0)")
        for i in range(12): A(f"ds_read_b128 {vr(4*i,4)}, v{T+1} offset:{1024*i}")
        for i in range(12):
            A(f"s_waitcnt lgkmcnt({11-i})\nbuffer_store_dwordx4 {vr(4*i,4)}, v{T+3+i%3}, s[4:7], s33 offen{SM}")
            if i%3==2: A(f"s_add_u32 s33, s33, {2*QKV_PLANE}")
    A("s_mov_b32 s44, 0")
    if gu: k23.early_kv(A)
    if not SS: stamp(A,2)
    A("s_branch PHB")
import struct
def hx(f): return "0x%08x"%struct.unpack('<I',struct.pack('<f',f))[0]
def gen(A):
    head(A,KNAME)
    A(f"""
    s_cmp_ge_u32 s2, 256
    s_cbranch_scc1 K1_exit
    """); stamp(A,0); A(f"""
    s_load_dwordx4 s[40:43], s[0:1], 0
    s_load_dwordx4 s[44:47], s[0:1], 32
    s_load_dwordx4 s[72:75], s[0:1], 64
    v_lshrrev_b32 v1, 6, v0
    v_and_b32 v207, 63, v0
    s_and_b32 s3, s2, 7
    v_readfirstlane_b32 s20, v1
    s_lshr_b32 s4, s2, 3
    s_and_b32 s5, s3, 1
    s_lshr_b32 s6, s3, 1
    s_and_b32 s7, s4, 3
    s_lshl_b32 s5, s5, 2
    s_add_u32 s5, s5, s7
    s_lshr_b32 s4, s4, 2
    s_lshl_b32 s21, s5, 8
    s_lshl_b32 s7, s20, 5
    s_add_u32 s21, s21, s7
    v_lshrrev_b32 v{T}, 3, v207
    v_add_u32 v{T}, s21, v{T}
    v_mul_u32_u24 v{T}, 1280, v{T}
    v_lshrrev_b32 v{T+1}, 4, v207
    v_xor_b32 v{T+1}, v{T+1}, v207
    v_and_b32 v{T+1}, 7, v{T+1}
    v_lshl_add_u32 v{VX}, v{T+1}, 4, v{T}
    v_xor_b32 v{VX+1}, 64, v{VX}
    v_add_u32 v{VX+1}, {8*1280}, v{VX+1}
    v_add_u32 v{VX+2}, {16*1280}, v{VX}
    v_add_u32 v{VX+3}, {16*1280}, v{VX+1}
    v_and_b32 v{T}, 31, v207
    v_lshrrev_b32 v{T+1}, 5, v207
    v_bfe_u32 v{T+2}, v207, 1, 3
    v_xor_b32 v{T+1}, v{T+1}, v{T+2}
    v_lshlrev_b32 v{T}, 7, v{T}
    v_lshl_add_u32 v{T}, v{T+1}, 4, v{T}
    s_mul_i32 s7, s20, {XW}
    v_add_u32 v{VXR}, s7, v{T}
    v_xor_b32 v{VXR+1}, 32, v{VXR}
    v_xor_b32 v{VXR+2}, 64, v{VXR}
    v_xor_b32 v{VXR+3}, 96, v{VXR}
    s_lshl_b32 s54, s5, 8
    s_lshl_b32 s7, s4, 5
    s_add_u32 s54, s54, s7
    s_and_b32 s55, s5, 3
    s_mul_i32 s55, s55, 160
    s_mov_b32 s50, s4
    s_mov_b32 s51, s6
    s_mov_b32 s57, s5
    s_lshl_b32 s7, s6, 3
    s_add_u32 s7, s7, s4
    s_mov_b32 s32, 0xffff0000
    s_waitcnt lgkmcnt(0)
    s_mov_b32 s48, s74
    s_mov_b32 s49, s75
    """)
    srd(A,68,72,256); srd(A,64,48,CSP_OFF+30*8*768,ST_OFF)
    A("s_lshl_b32 s72, s57, 5\ns_add_u32 s72, s72, s7\ns_lshl_b32 s73, s72, 3\ns_add_u32 s73, s73, s20")
    srd(A,8,40,2621440)
    if 'cpf' in EXP:
        A(f"""s_cmp_ge_u32 s2, 32
        s_cbranch_scc1 K1_nocpf
        s_getpc_b64 s[36:37]
        s_lshr_b32 s3, s2, 3
        s_lshl_b32 s3, s3, 3
        s_add_u32 s3, s3, s20
        s_mul_i32 s3, s3, 1088
        v_lshlrev_b32 v{T}, 6, v207
        v_add_u32 v{T}, s3, v{T}
        s_mov_b64 exec, 0x1ffff
        global_load_dword v{PF+2}, v{T}, s[36:37]
        s_mov_b64 exec, -1
        K1_nocpf:""")
    A(f"""s_cmp_lt_u32 s50, 3
    s_cbranch_scc0 K1_gu
    s_mul_i32 s51, s51, 3
    s_add_u32 s51, s51, s50
    s_mul_i32 s22, s51, 160
    s_mov_b32 s58, s51
    s_mov_b32 s59, s21
    s_lshl_b32 s27, s51, 3
    s_cmp_lt_u32 s51, 4
    s_cselect_b32 s23, {hx(20**-0.5*math.log2(math.e))}, 1.0
    """)
    srd(A,12,42,640*3840); srd(A,16,42,640*3840-160,160); srd(A,4,48,96*QKV_PLANE)
    variant(A,5,False)
    A(f"""K1_gu:
    s_sub_u32 s50, s50, 3
    s_mul_i32 s52, s51, 5
    s_lshl_b32 s53, s51, 2
    s_add_u32 s53, s53, 2
    s_cmp_lt_u32 s51, 2
    s_cselect_b32 s52, s52, s53
    s_cselect_b32 s53, 5, 4
    s_cmp_ge_u32 s50, s53
    s_cbranch_scc1 K1_pack
    s_add_u32 s52, s52, s50
    s_mul_i32 s22, s52, 96
    s_add_u32 s58, s52, 12
    s_and_b32 s3, s20, 3
    s_lshl_b32 s59, s3, 6
    s_lshl_b32 s26, s57, 8
    s_add_u32 s59, s59, s26
    s_lshl_b32 s3, s3, 1
    s_sub_i32 s3, s3, s20
    s_mul_i32 s3, s3, {XW}
    v_add_u32 v{VXR}, s3, v{VXR}
    v_add_u32 v{VXR+1}, s3, v{VXR+1}
    v_add_u32 v{VXR+2}, s3, v{VXR+2}
    v_add_u32 v{VXR+3}, s3, v{VXR+3}
    """)
    srd(A,12,44,640*3456); srd(A,16,46,640*3456); srd(A,4,48,HO_BYTES,HO_OFF)
    variant(A,6,True)
    pack(A)
    import k23; k23.gen(A)
    A("K1_exit:\ns_endpgm")

def pack(A):
    A("K1_pack:")
    A(f"""
    s_load_dwordx2 s[42:43], s[0:1], 16
    s_load_dwordx2 s[44:45], s[0:1], 48
    s_sub_u32 s51, s51, 2
    s_lshl_b32 s51, s51, 3
    s_add_u32 s28, s51, s5
    s_mul_i32 s24, s20, 5120
    v_lshl_add_u32 v{T}, v207, 4, s24
    v_lshrrev_b32 v{T+1}, 4, v207
    v_lshlrev_b32 v{T+1}, 3, v{T+1}
    v_bfe_u32 v{T+2}, v207, 2, 2
    v_add_u32 v{T+1}, v{T+1}, v{T+2}
    v_mul_u32_u24 v{T+1}, 1280, v{T+1}
    v_and_b32 v{T+2}, 3, v207
    v_lshl_add_u32 v{T+1}, v{T+2}, 3, v{T+1}
    s_mul_i32 s3, s20, 160
    v_add_u32 v{T+1}, s3, v{T+1}
    s_mul_i32 s3, s20, {74*5120}
    v_lshl_add_u32 v{T+2}, v207, 4, s3
    v_add_u32 v{T+3}, 4096, v{T}
    v_add_u32 v{T+4}, 4096, v{T+2}
    s_waitcnt lgkmcnt(0)""")
    srd(A,4,48,WP_BYTES,WP_OFF)
    def issue(i):
        A(f"""s_add_u32 s27, s28, {16*i}
        s_cmp_ge_u32 s27, 54
        s_cselect_b32 s12, s42, s44
        s_cselect_b32 s13, s43, s45
        s_mov_b32 s14, {1728*1280}
        s_cselect_b32 s14, {640*1280}, s14
        s_mov_b32 s15, 0x20000
        s_cselect_b32 s3, 54, 0
        s_sub_u32 s3, s27, s3
        s_add_u32 m0, s24, {(i%3)*40960}
        s_mul_i32 s31, s3, {32*1280}""")
        for j in range(4): A(f"buffer_load_dwordx4 v{T}, s[12:15], s31 offen offset:{1024*j} lds")
        A(f"s_add_u32 m0, s24, {(i%3)*40960+4096}\ns_nop 0\nbuffer_load_dwordx4 v{T+3}, s[12:15], s31 offen lds")
    for i in range(3): issue(i)
    rowload(A); A("s_waitcnt vmcnt(0)"); rowstat(A); nonce_get(A,'P',U,-1); A("s_waitcnt vmcnt(0)\ns_barrier"); flagset(A,'P')
    A(f"v_add_u32 v{T+5}, {2*40960}, v{T+1}")
    for i in range(5):
        if i>=3: A(f"s_waitcnt vmcnt({15 if i==3 else 10})\ns_barrier")
        for t in range(5):
            for e in range(2): A(f"ds_read_b64_tr_b16 {vr(20*(i&1)+4*t+2*e,2)}, v{T+5 if i%3==2 else T+1} offset:{(i%3%2)*40960+e*4*1280+t*32}")
        A("s_waitcnt lgkmcnt(0)")
        if i<2: A("s_barrier"); issue(i+3)
        A(f"s_add_u32 s27, s28, {16*i}\ns_mul_i32 s30, s27, 5120\ns_cmp_lt_u32 s27, 74\ns_cselect_b32 s30, s30, 0x40000000")
        for t in range(4): A(f"buffer_store_dwordx4 {vr(20*(i&1)+4*t,4)}, v{T+2}, s[4:7], s30 offen offset:{1024*t}{SM}")
        A(f"buffer_store_dwordx4 {vr(20*(i&1)+16,4)}, v{T+4}, s[4:7], s30 offen{SM}")

def rowload(A):
    A(f"""s_mul_i32 s26, s73, 1280
    v_mul_u32_u24 v{XS+5}, 20, v207
    buffer_load_dwordx4 {vr(XS,4)}, v{XS+5}, s[8:11], s26 offen
    buffer_load_dword v{XS+4}, v{XS+5}, s[8:11], s26 offen offset:16""")
def rowstat(A):
    S=XS+6; Q=XS+7
    for i in range(5):
        A(f"v_lshlrev_b32 v{U}, 16, v{XS+i}\nv_and_b32 v{U+1}, s32, v{XS+i}")
        if i==0: A(f"v_add_f32 v{S}, v{U}, v{U+1}\nv_mul_f32 v{Q}, v{U}, v{U}\nv_fmac_f32 v{Q}, v{U+1}, v{U+1}")
        else: A(f"v_add_f32 v{S}, v{S}, v{U}\nv_fmac_f32 v{Q}, v{U}, v{U}\nv_add_f32 v{S}, v{S}, v{U+1}\nv_fmac_f32 v{Q}, v{U+1}, v{U+1}")
    for d in ["row_shr:1","row_shr:2","row_shr:4","row_shr:8","row_bcast:15 row_mask:0xa","row_bcast:31 row_mask:0xc"]:
        bc = " bound_ctrl:0" if "shr" in d else ""
        A(f"s_nop 1\nv_add_f32_dpp v{S}, v{S}, v{S} {d}{bc}\nv_add_f32_dpp v{Q}, v{Q}, v{Q} {d}{bc}")
    A(f"""v_mul_f32 v{S}, {hx(-1/640)}, v{S}
    v_mul_f32 v{Q}, {hx(1/640)}, v{Q}
    v_fma_f32 v{Q}, -v{S}, v{S}, v{Q}
    v_max_f32 v{Q}, 0, v{Q}
    v_add_f32 v{Q}, {hx(1e-5)}, v{Q}
    v_rsq_f32 v{Q}, v{Q}
    v_cmp_eq_u32 vcc, 63, v207
    v_mov_b32 v{U}, 0x40000000
    s_lshl_b32 s26, s73, 3
    v_cndmask_b32 v{U}, v{U}, 0, vcc
    buffer_store_dwordx2 {vr(S,2)}, v{U}, s[64:67], s26 offen sc1""")
def flagset(A,P): flag_put(A,U,207,72,FL_OFF)
def flagpoll(A,P):
    A(f"""s_cmp_lg_u32 s20, 0
    s_cbranch_scc1 FP{P}_done
    v_and_b32 v{U}, 7, v207
    s_and_b32 s26, s72, 31
    v_lshl_add_u32 v{U}, v{U}, 5, s26
    s_and_b32 s26, s72, 0xe0
    v_add_u32 v{U+1}, s26, v207
    v_cmp_gt_u32 vcc, 32, v207
    s_nop 1
    v_cndmask_b32 v{U}, v{U}, v{U+1}, vcc""")
    flag_wait(A,P,U,FL_OFF)
```

```python
from common import *
PB=int(os.environ.get('PB','0'))
def st(i): return f's_memrealtime s[{84+2*i}:{85+2*i}]\n' if (STAMP and PB) else ''
LM=os.environ.get('LM','sc1'); LN=251; FA_OFF=FL_OFF+32768; FO_OFF=FL_OFF+65536; CNT=73728; RED=81920
def att_ids(A):
    T=230
    A(f"""
    s_sub_u32 s23, s20, 4
    s_and_b32 s38, s2, 7
    s_lshr_b32 s39, s2, 3
    s_and_b32 s42, s39, 1
    s_lshl_b32 s21, s38, 1
    s_add_u32 s21, s21, s42
    s_lshr_b32 s22, s39, 1
    s_lshr_b32 s38, s21, 2
    v_and_b32 v{T}, 3, v{LN}
    v_min_u32 v{T}, 2, v{T}
    v_lshl_add_u32 v{T}, v{T}, 2, s38
    s_mov_b32 s39, {(2**32+2)//3}
    v_mul_hi_u32 v{T+1}, v{T}, s39
    v_mul_u32_u24 v{T+2}, 5, v{T+1}
    v_add_u32 v{T}, v{T}, v{T+2}
    s_lshr_b32 s39, s22, 1
    s_sub_u32 s42, s39, 1
    s_max_i32 s42, s42, 0
    s_lshl_b32 s39, s39, 5
    s_lshl_b32 s42, s42, 5
    v_add_u32 v{T+1}, s42, v{T}
    v_add_u32 v{T}, s39, v{T}
    v_cmp_gt_u32 vcc, 32, v{LN}
    s_nop 1
    v_cndmask_b32 v{T}, v{T+1}, v{T}, vcc""")
def att_kv(A,P):
    QF=214; T=230
    A(f"""{st(1)}s_lshr_b32 s38, s23, 1
    s_and_b32 s39, s23, 1
    s_lshl_b32 s39, s39, 5
    s_lshl_b32 s42, s21, 1
    s_add_u32 s38, s38, s42
    s_add_u32 s38, s38, s39
    s_add_u32 s38, s38, 32
    s_mul_i32 s38, s38, {QKV_PLANE}
    s_add_u32 s8, s48, s38
    s_addc_u32 s9, s49, 0
    s_mov_b32 s10, {QKV_PLANE}
    s_mov_b32 s11, 0x20000
    s_mul_i32 s38, s42, {QKV_PLANE}
    s_add_u32 s12, s48, s38
    s_addc_u32 s13, s49, 0
    s_mov_b32 s14, {2*QKV_PLANE}
    s_mov_b32 s15, 0x20000
    s_mul_i32 s27, s22, 6144
    s_sub_u32 s27, s27, 12288
    s_mul_i32 s28, s23, 18432
    v_lshlrev_b32 v{T}, 4, v{LN}
    s_mov_b32 s29, 0
    ATT_dma{P}:
    s_cmp_lt_i32 s27, 0
    s_cselect_b32 s30, 0x40000000, s27
    s_mov_b32 m0, s28
    s_add_u32 s27, s27, 3072
    s_add_u32 s28, s28, 3072
    buffer_load_dwordx4 v{T}, s[8:11], s30 offen sc1 lds
    buffer_load_dwordx4 v{T}, s[8:11], s30 offen offset:1024 sc1 lds
    buffer_load_dwordx4 v{T}, s[8:11], s30 offen offset:2048 sc1 lds
    s_add_u32 s29, s29, 1
    s_cmp_lt_u32 s29, 6
    s_cbranch_scc1 ATT_dma{P}
    s_lshl_b32 s25, s23, 5
    s_lshl_b32 s26, s22, 7
    s_add_u32 s26, s26, s25
    v_and_b32 v{T+1}, 31, v{LN}
    v_lshrrev_b32 v{T+2}, 5, v{LN}
    v_add_u32 v{T+3}, s26, v{T+1}
    v_mul_u32_u24 v{T+4}, 48, v{T+3}
    v_lshlrev_b32 v{T+5}, 30, v{T+2}
    v_add3_u32 v{T+5}, v{T+5}, v{T+4}, 32
    v_lshl_add_u32 v{T+4}, v{T+2}, 4, v{T+4}
    s_mov_b32 s30, {QKV_PLANE}
    buffer_load_dwordx4 {vr(QF,4)}, v{T+4}, s[12:15], 0 offen sc1
    buffer_load_dwordx2 {vr(QF+4,2)}, v{T+5}, s[12:15], 0 offen sc1
    buffer_load_dwordx4 {vr(QF+6,4)}, v{T+4}, s[12:15], s30 offen sc1
    buffer_load_dwordx2 {vr(QF+10,2)}, v{T+5}, s[12:15], s30 offen sc1""")
def early_poll(A):
    T=230
    A(f"s_cmp_lt_u32 s20, 4\ns_cbranch_scc1 EP_a\nv_mov_b32 v{LN}, v207"); att_ids(A)
    A(f"v_lshlrev_b32 v{T+1}, 7, v{T}\ns_mov_b32 s83, {FA_OFF}\nbuffer_load_dword v{T+2}, v{T+1}, s[64:67], s83 offen sc1\nEP_a:")
def early_kv(A):
    T=230
    A(f"s_cmp_lt_u32 s20, 4\ns_cbranch_scc1 EP_b\ns_waitcnt vmcnt(1)\nv_cmp_ne_u32 vcc, s82, v{T+2}\ns_cbranch_vccnz EP_b")
    att_kv(A,'b'); A("s_mov_b32 s44, 1\nEP_b:")
def attn(A):
    S=0; KF=144; O=198; QF=214; HP=226; T=230
    A(f"""ATT:
    s_setprio 3
    s_cmp_eq_u32 s44, 1
    s_cbranch_scc1 ATT_kvdone""")
    att_ids(A); flag_wait(A,'Q2',T,FA_OFF); att_kv(A,'a')
    A("ATT_kvdone:")
    srd(A,4,48,HO_BYTES,HO_OFF)
    A(f"""v_lshlrev_b32 v{T+6}, 2, v{T+2}
    v_sub_u32 v{T+6}, v{T+6}, v{T+1}
    v_add_u32 v{T+16}, 16, v{T+6}
    v_mov_b32 v{T+7}, 0xf149f2ca
    v_mov_b32 v{T+18}, 0x3f803f80
    v_mov_b32 v{T+19}, 0x3f803f80
    v_cmp_gt_u32 vcc, 32, v{LN}
    v_add_u32 v{T+8}, s25, v{T+1}
    v_mul_u32_u24 v{T+8}, 48, v{T+8}
    v_add_u32 v{T+9}, 32, v{T+8}
    v_lshl_add_u32 v{T+8}, v{T+2}, 4, v{T+8}
    v_bfe_u32 v{T+10}, v{LN}, 2, 2
    v_lshl_add_u32 v{T+10}, v{T+2}, 2, v{T+10}
    v_add_u32 v{T+10}, s25, v{T+10}
    v_mul_u32_u24 v{T+10}, 48, v{T+10}
    v_bfe_u32 v{T+11}, v{LN}, 4, 1
    v_and_b32 v{T+12}, 3, v{LN}
    v_lshl_add_u32 v{T+11}, v{T+11}, 2, v{T+12}
    v_lshlrev_b32 v{T+11}, 2, v{T+11}
    s_mov_b32 s30, 0x55543120
    s_mov_b32 s31, 0x55504231
    v_lshrrev_b32 v{T+12}, v{T+11}, s30
    v_lshrrev_b32 v{T+11}, v{T+11}, s31
    v_and_b32 v{T+12}, 15, v{T+12}
    v_and_b32 v{T+11}, 15, v{T+11}
    v_add_u32 v{T+10}, 18432, v{T+10}
    v_lshl_add_u32 v{T+17}, v{T+11}, 3, v{T+10}
    v_add_u32 v{T+17}, 36864, v{T+17}
    v_lshl_add_u32 v{T+10}, v{T+12}, 3, v{T+10}
    v_lshrrev_b32 v{T+4}, 4, v{T+3}
    v_mul_u32_u24 v{T+4}, {74*1024}, v{T+4}
    v_and_b32 v{T+3}, 15, v{T+3}
    v_lshl_add_u32 v{T+4}, v{T+3}, 4, v{T+4}
    s_mul_i32 s34, s21, 1280
    s_add_u32 s34, s34, {54*1024}
    v_add_u32 v{T+4}, s34, v{T+4}
    v_lshl_add_u32 v{T+3}, v{T+2}, 8, v{T+4}
    v_lshlrev_b32 v{T+5}, 30, v{T+2}
    v_add_u32 v{T+5}, v{T+5}, v{T+4}
    s_lshl_b32 s31, s22, 2
    s_add_u32 s31, s31, s23
    s_sub_i32 s31, 8, s31
    v_mov_b32 v{T+12}, {CNT}
    v_mov_b32 v{T+13}, 1
    s_waitcnt vmcnt(0)
    s_mov_b64 exec, 1
    ds_add_u32 v{T+12}, v{T+13}
    s_mov_b64 exec, -1
    ATT_sp:
    ds_read_b32 v{T+13}, v{T+12}
    s_waitcnt lgkmcnt(0)
    v_readfirstlane_b32 s3, v{T+13}
    s_cmp_lt_u32 s3, 4
    s_cbranch_scc1 ATT_sp
    s_mov_b32 s35, 0
    {st(2)}s_waitcnt lgkmcnt(0)
    ATT_u:""")
    for t in range(7): A(f"ds_read_b128 {vr(KF+6*t,4)}, v{T+8} offset:{t*1536}\nds_read_b64 {vr(KF+6*t+4,2)}, v{T+9} offset:{t*1536}")
    def cmp(r):
        c=8*(r>>2)+(r&3)
        return f"v_cmp_lt_i32 {sr(36+2*(r%3),2)}, {-c if c<16 else 16-c}, v{T+6 if c<16 else T+16}"
    A(cmp(0)); A(cmp(1))
    for r in range(16):
        A(cmp(r+2) if r+2<16 else "s_nop 0")
        A(f"v_cndmask_b32 v{S+r}, v{T+7}, 0, {sr(36+2*(r%3),2)}\nv_cndmask_b32 v{S+128+r}, 0, v{T+7}, {sr(36+2*(r%3),2)}")
    VF=KF; P=KF+32; M=T+12
    A(f"v_mov_b32 v{HP+1}, 0\nv_mov_b32 v{HP}, 0xf149\nv_cndmask_b32 v{HP}, 0, v{HP}, vcc")
    def mx(t):
        return [(f"v_max_f32 v{M+(p&3)}, v{S+2*p}, v{S+2*p+1}" if t==0 and p<4 else f"v_max3_f32 v{M+(p&3)}, v{S+16*t+2*p}, v{S+16*t+2*p+1}, v{M+(p&3)}") for p in range(8)]
    for t in range(7,9): A(f"ds_read_b128 {vr(KF+6*t,4)}, v{T+8} offset:{t*1536}\nds_read_b64 {vr(KF+6*t+4,2)}, v{T+9} offset:{t*1536}")
    for t in range(13):
        if t<9:
            A(f"s_waitcnt lgkmcnt({min(15,16-2*t)})")
            c = vr(S+16*t,16) if t in (0,8) else "0"
            A(f"v_mfma_f32_32x32x16_bf16 {vr(S+16*t,16)}, {vr(KF+6*t,4)}, {vr(QF,4)}, {c}")
        if t==4: A("s_nop 3")
        if t>=4:
            for x in mx(t-4)[:4]: A(x)
        if 2<=t<11:
            u=t-2
            A(f"v_mfma_f32_32x32x8_bf16 {vr(S+16*u,16)}, {vr(KF+6*u+4,2)}, {vr(QF+4,2)}, {vr(S+16*u,16)}")
            if u<8: A(f"s_cmp_le_i32 s31, {u}\ns_cbranch_scc1 ATT_v{t}\nv_mfma_f32_32x32x8_bf16 {vr(S+16*u,16)}, {vr(T+18,2)}, {vr(HP,2)}, {vr(S+16*u,16)}\ns_nop 7\nATT_v{t}:")
        if t>=11: A("s_nop 5")
        if t>=4:
            for x in mx(t-4)[4:]: A(x)
    def vread(t):
        b=VF+8*(t%4)
        return [f"ds_read_b64_tr_b16 {vr(b+4*u+2*z,2)}, v{T+10} offset:{t*1536+(16*u+8*z)*48}" for u in range(2) for z in range(2)]
    for t in range(3):
        for x in vread(t): A(x)
    A(f"""v_max3_f32 v{M}, v{M}, v{M+1}, v{M+2}
    v_max_f32 v{M}, v{M}, v{M+3}
    v_mov_b32 v{M+1}, v{M}
    s_nop 1
    v_permlane32_swap_b32 v{M}, v{M+1}
    s_nop 1
    v_max_f32 v{M}, v{M}, v{M+1}
    v_cvt_pk_bf16_f32 v{M+1}, v{M}, v{M}
    v_and_b32 v{M+1}, 0xffff0000, v{M+1}
    v_sub_f32 v{M+2}, v{M}, v{M+1}
    v_cvt_pk_bf16_f32 v{M+2}, -v{M+1}, -v{M+2}
    v_mov_b32 v{M+3}, 0
    v_cndmask_b32 v{M+2}, 0, v{M+2}, vcc
    s_nop 1""")
    def sub(t): return f"v_mfma_f32_32x32x8_bf16 {vr(S+16*t,16)}, {vr(T+18,2)}, {vr(M+2,2)}, {vr(S+16*t,16)}"
    A(sub(0)); A(sub(1)); A("s_nop 7\ns_nop 2")
    for t in range(9):
        a=S+16*t; Pb=P+8*(t&1)
        for i in range(16):
            A(f"v_exp_f32 v{a+i}, v{a+i}")
            if i==3 and t+2<9: A(sub(t+2))
        if t+3<9:
            for x in vread(t+3): A(x)
        else: A("s_nop 0")
        for p in range(8): A(f"v_cvt_pk_bf16_f32 v{Pb+p}, v{a+2*p}, v{a+2*p+1}")
        A(f"s_waitcnt lgkmcnt({4*min(3,8-t)})\ns_nop 0")
        b=VF+8*(t%4)
        for u in range(2): A(f"v_mfma_f32_32x32x16_bf16 {vr(O,16)}, {vr(b+4*u,4)}, {vr(Pb+4*u,4)}, {vr(O,16) if t or u else 0}")
    A(f"s_nop 7\ns_nop 4\nv_rcp_f32 v{M}, v{O+12}\nv_mov_b32 v{HP}, v{HP+2}\nv_mov_b32 v{HP+1}, v{HP+3}")
    for p in range(6): A(f"v_pk_mul_f32 {vr(O+2*p,2)}, {vr(O+2*p,2)}, {vr(M,2)} op_sel_hi:[1,0]")
    for p in range(4): A(f"v_cvt_pk_bf16_f32 v{P+16+p}, v{O+2*p}, v{O+2*p+1}")
    for p in range(2): A(f"v_cvt_pk_bf16_f32 v{HP+2+p}, v{O+8+2*p}, v{O+9+2*p}")
    A(f"buffer_store_dwordx4 {vr(P+16,4)}, v{T+3}, s[4:7], 0 offen sc1")
    for i in range(6): A(f"v_mov_b32 v{QF+i}, v{QF+6+i}")
    A(f"""v_add_u32 v{T+3}, 768, v{T+3}
    v_add_u32 v{T+8}, 36864, v{T+8}
    v_add_u32 v{T+9}, 36864, v{T+9}
    v_mov_b32 v{T+10}, v{T+17}
    s_add_u32 s35, s35, 1
    s_cmp_lt_u32 s35, 2
    s_cbranch_scc1 ATT_u
    {st(3)}buffer_store_dwordx4 {vr(HP,4)}, v{T+5}, s[4:7], 0 offen offset:512 sc1
    v_mov_b32 v{T+12}, {CNT}
    v_mov_b32 v{T+13}, 1
    s_waitcnt vmcnt(0)
    {st(4)}""")
    if PB: stamp_out(A,0,LN,T+14)
    A(f"""s_mov_b64 exec, 1
    ds_add_rtn_u32 v{T+13}, v{T+12}, v{T+13} offset:4
    s_mov_b64 exec, -1
    s_waitcnt lgkmcnt(0)
    v_readfirstlane_b32 s3, v{T+13}
    s_cmp_lg_u32 s3, 3
    s_cbranch_scc1 K1_exit
    s_lshl_b32 s3, s22, 4
    s_add_u32 s3, s3, s21
    s_mov_b32 s20, 4""")
    flag_put(A,T,LN,3,FO_OFF,wave=4)
    A(f"v_and_b32 v{T}, 15, v{LN}\ns_lshr_b32 s3, s50, 1\ns_lshl_b32 s3, s3, 4\nv_add_u32 v{T}, s3, v{T}")
    flag_wait(A,'O2',T,FO_OFF)
    A(f"v_mov_b32 v{T+13}, 1\nds_write_b32 v{T+12}, v{T+13} offset:8\ns_waitcnt lgkmcnt(0)\ns_endpgm")
def gen(A):
    ACC=0; F=80; XR=224; VA=234; VW=238; T=240; NSET=4
    A(f"""s_mov_b32 s44, 0
PHB:
    s_load_dwordx2 s[46:47], s[0:1], 56
    v_mov_b32 v{LN}, v207
    v_mov_b32 v{T}, {CNT}
    v_mov_b32 v{T+2}, 0
    v_mov_b32 v{T+3}, 0
    s_and_b32 s3, s2, 7
    s_lshr_b32 s4, s2, 3
    s_lshr_b32 s5, s3, 1
    s_lshl_b32 s5, s5, 3
    s_and_b32 s6, s4, 7
    s_add_u32 s50, s5, s6
    s_and_b32 s3, s3, 1
    s_lshl_b32 s3, s3, 2
    s_lshr_b32 s4, s4, 3
    s_add_u32 s51, s3, s4
    s_cmp_eq_u32 s44, 1
    s_cbranch_scc1 PHB_e
    s_waitcnt vmcnt(0)
    PHB_e:
    s_waitcnt vmcnt(22) lgkmcnt(0)
    s_barrier
    ds_write_b64 v{T}, {vr(T+2,2)}
    ds_write_b32 v{T}, v{T+2} offset:8""")
    flag_put(A,T+4,LN,72,FA_OFF)
    A("s_waitcnt lgkmcnt(0)\ns_barrier\ns_cmp_ge_u32 s20, 4\ns_cbranch_scc1 ATT")
    if not PB and not os.environ.get('SS'): stamp(A,3)
    A(f"""s_lshr_b32 s3, s50, 2
    s_lshl_b32 s3, s3, 5
    v_add_u32 v{T}, s3, v{LN}
    v_and_b32 v{T+1}, 7, v{LN}
    v_lshlrev_b32 v{T+1}, 5, v{T+1}
    v_and_b32 v{T+2}, 8, v{LN}
    v_add3_u32 v{T+1}, v{T+1}, v{T+2}, 23
    v_cmp_gt_u32 vcc, 32, v{LN}
    s_lshl_b32 s21, s50, 6
    s_mul_i32 s22, s51, 160
    v_cndmask_b32 v{T}, v{T+1}, v{T}, vcc
    s_mul_i32 s27, s20, 14
    s_cmp_eq_u32 s20, 3
    s_cselect_b32 s27, 41, s27
    s_mul_i32 s5, s50, {4*74*1024}
    s_mul_i32 s3, s51, {74*5120}
    v_lshl_add_u32 v{VA}, v{LN}, 4, s5
    v_add_u32 v{VA+1}, {74*1024}, v{VA}
    v_add_u32 v{VA+2}, {2*74*1024}, v{VA}
    v_add_u32 v{VA+3}, {3*74*1024}, v{VA}
    v_lshl_add_u32 v{VW}, v{LN}, 4, s3
    v_add_u32 v{VW+1}, 4096, v{VW}
    s_lshl_b32 s30, s27, 10
    s_mul_i32 s31, s27, 5120
    v_and_b32 v{T+5}, 15, v{LN}
    v_lshrrev_b32 v{T+4}, 4, v{LN}
    s_lshl_b32 s3, s20, 4
    s_add_u32 s3, s3, s21
    v_add_u32 v{T+5}, s3, v{T+5}
    v_mul_u32_u24 v{T+5}, 1280, v{T+5}
    v_lshl_add_u32 v{T+5}, v{T+4}, 3, v{T+5}
    v_add_u32 v{T+8}, s22, v{T+5}""")
    srd(A,4,40,2621440); srd(A,8,48,HO_BYTES,HO_OFF); srd(A,12,48,WP_BYTES,WP_OFF); srd(A,16,46,2621440)
    for t in range(5): A(f"buffer_load_dwordx2 {vr(XR+2*t,2)}, v{T+8}, s[4:7], 0 offen offset:{32*t}")
    flag_wait(A,'H2',T,FA_OFF)
    if not os.environ.get('SS'): stamp(A,1 if PB else 4)
    def ldw(i):
        b=F+36*(i%NSET)
        L=[f"buffer_load_dwordx4 {vr(b+16+4*t,4)}, v{VW+(t>>2)}, s[12:15], s31 offen offset:{(t&3)*1024} {LM}" for t in range(5)]
        if i==14: L[0]="s_mul_i32 s3, s20, 5\ns_add_u32 s3, s3, 54\ns_lshl_b32 s30, s3, 10\ns_mul_i32 s31, s3, 5120\n"+L[0]
        L[-1]+="\ns_add_u32 s31, s31, 5120"
        return L
    def lda(i):
        b=F+36*(i%NSET)
        L=[f"buffer_load_dwordx4 {vr(b+4*j,4)}, v{VA+j}, s[8:11], s30 offen {LM if i<14 else 'sc1'}" for j in range(4)]
        if i==13: L[0]="s_cmp_ge_u32 s20, 2\ns_cselect_b32 s30, 0x40000000, s30\n"+L[0]
        L[-1]+="\ns_add_u32 s30, s30, 1024"
        return L
    def ld(i): return ldw(i)+(lda(i) if i not in (14,15,16) else [])
    def mf(i):
        b=F+36*(i%NSET)
        return [f"v_mfma_f32_16x16x32_bf16 {vr(ACC+4*(5*j+t),4)}, {vr(b+16+4*t,4)}, {vr(b+4*j,4)}, {vr(ACC+4*(5*j+t),4) if i else 0}" for t in range(5) for j in range(4)]
    for i in range(NSET-1):
        for x in ld(i): A(x)
    for i in range(19):
        nxt=i+NSET-1
        if i==14:
            A(f"""{st(2)}v_mov_b32 v{T}, {CNT}
            s_mov_b32 s26, 0x1000000
            GO_sp:
            ds_read_b32 v{T+1}, v{T} offset:8
            s_sub_u32 s26, s26, 1
            s_cbranch_scc1 GO_dn
            s_waitcnt lgkmcnt(0)
            v_readfirstlane_b32 s3, v{T+1}
            s_cmp_eq_u32 s3, 0
            s_cbranch_scc1 GO_sp
            GO_dn:
            {st(3)}""")
            for x in lda(14)+lda(15)+lda(16): A(x)
        A(f"s_waitcnt vmcnt({ {12:14,13:10,14:8,15:13}.get(i, 9*(min(19,i+NSET-1)-1-i)) })")
        for x in interleave(mf(i), ld(nxt) if nxt<19 else []): A(x)
    A(f"""{st(4)}s_mul_i32 s3, s20, 20480
    s_add_u32 s3, s3, {RED}
    v_lshl_add_u32 v{T}, v{LN}, 4, s3
    s_mul_i32 s3, s20, 5120
    s_add_u32 s3, s3, {RED}
    v_lshl_add_u32 v{T+1}, v{LN}, 4, s3
    v_add_u32 v{T+2}, 40960, v{T+1}
    s_nop 4""")
    for i in range(20): A(f"ds_write_b128 v{T}, {vr(ACC+4*i,4)} offset:{i*1024}")
    A("s_waitcnt lgkmcnt(0)\ns_barrier")
    def rr(t):
        for w in range(4): A(f"ds_read_b128 {vr(16*t+4*w,4)}, v{T+1+(w>>1)} offset:{(w&1)*20480+t*1024}")
    rr(0); rr(1); rr(2)
    for t in range(5):
        b=16*t
        A(f"s_waitcnt lgkmcnt({[8,8,8,4,0][t]})")
        if t<2: rr(t+3)
        A(f"""v_lshlrev_b32 v{F}, 16, v{XR+2*t}
        v_and_b32 v{F+1}, 0xffff0000, v{XR+2*t}
        v_lshlrev_b32 v{F+2}, 16, v{XR+2*t+1}
        v_and_b32 v{F+3}, 0xffff0000, v{XR+2*t+1}""")
        for p in range(2):
            A(f"""v_pk_add_f32 {vr(b+2*p,2)}, {vr(b+2*p,2)}, {vr(b+4+2*p,2)}
            v_pk_add_f32 {vr(b+8+2*p,2)}, {vr(b+8+2*p,2)}, {vr(b+12+2*p,2)}
            v_pk_add_f32 {vr(b+2*p,2)}, {vr(b+2*p,2)}, {vr(F+2*p,2)}
            v_pk_add_f32 {vr(b+2*p,2)}, {vr(b+2*p,2)}, {vr(b+8+2*p,2)}""")
        A(f"v_cvt_pk_bf16_f32 v{b+4}, v{b}, v{b+1}\nv_cvt_pk_bf16_f32 v{b+5}, v{b+2}, v{b+3}")
        A(f"buffer_store_dwordx2 {vr(b+4,2)}, v{T+8}, s[16:19], 0 offen offset:{32*t}")
    stamp_out(A,0,LN,T+9)
    A("s_endpgm")
    attn(A)
```

```python
from common import *
import math, k23
SM=' sc1'
CPF_TAIL=3000
NS=5; XW=3*4096; WB=8*XW; WS=12416; CSB=WB+NS*WS; K1_LDS=163840
ACC=0; FA=96; FB=124; CSR=152; VSUM=158; VSQ=159; VCS=160
VX=184; VW=165; VXR=188; VWR=168; VCR=169; T=170; U=192; PF=200; VS2=163; VQ2=164
XS=152; WL=208; END=228
K1_VG=252
def variant(A, NT, gu):
    P='G' if gu else 'Q'
    pitch=3456 if gu else 3840
    RD=NT*1024+128
    A(f"""
    s_mul_i32 s24, s20, {XW}
    s_mul_i32 s25, s20, {NT*128}
    s_add_u32 s25, s25, {WB}
    v_lshrrev_b32 v{T}, 3, v207
    v_bfe_u32 v{T+1}, v207, 1, 2
    v_and_b32 v{T+2}, 1, v207
    s_lshl_b32 s26, s20, 2
    v_add_u32 v{T+1}, s26, v{T+1}
    v_mul_u32_u24 v{T+1}, {pitch}, v{T+1}
    v_lshlrev_b32 v{T}, 5, v{T}
    v_lshl_add_u32 v{T}, v{T+2}, 4, v{T}
    s_lshl_b32 s26, s22, 1
    v_add3_u32 v{VW}, v{T}, v{T+1}, s26
    """)
    ehi = 0xffff if gu else 0xff
    def dmax(g):
        n=g>>1; j0=2*(g&1)
        return [f"s_add_u32 m0, s24, {(n%3)*4096+(j0+j)*1024}\ns_movk_i32 s30, {n*128}\nbuffer_load_dwordx4 v{VX+j0+j}, s[8:11], s30 offen lds" for j in range(2)]
    def dmaw(st):
        sl=st%NS
        return [f"s_add_u32 m0, s25, {sl*WS+R*RD}\ns_mov_b32 s31, {st*32*pitch}\ns_mov_b32 exec_hi, {ehi}\nbuffer_load_dwordx4 v{VW}, s[{12+4*R}:{15+4*R}], s31 offen lds\ns_mov_b32 exec_hi, -1" for R in range(2)]
    for d in dmaw(0)+dmax(0)+dmax(1): A(d)
    A('s_barrier')
    for d in dmaw(1): A(d)
    late(A)
    if gu: A(f"""s_and_b32 s3, s20, 3
    s_lshl_b32 s3, s3, 1
    s_sub_i32 s3, s3, s20
    s_mul_i32 s3, s3, {XW}
    v_add_u32 v{VXR}, s3, v{VXR}
    v_add_u32 v{VXR+1}, s3, v{VXR+1}
    v_add_u32 v{VXR+2}, s3, v{VXR+2}
    v_add_u32 v{VXR+3}, s3, v{VXR+3}
""")
    A(f"""
    v_lshrrev_b32 v{T}, 5, v207
    v_bfe_u32 v{T+1}, v207, 4, 1
    v_and_b32 v{T+2}, 1, v207
    v_bfe_u32 v{T+3}, v207, 2, 2
    v_bfe_u32 v{T+4}, v207, 1, 1
    v_mul_u32_u24 v{T+5}, {RD}, v{T+1 if gu else T+2}
    v_lshl_add_u32 v{T+5}, v{T+2 if gu else T+1}, 4, v{T+5}
    v_lshl_add_u32 v{T+5}, v{T+3}, 5, v{T+5}
    v_lshl_add_u32 v{T+5}, v{T+4}, 3, v{T+5}
    v_mul_u32_u24 v{T+6}, {2*NT*128}, v{T}
    v_add_u32 v{VWR}, {WB}, v{T+5}
    v_add_u32 v{VWR}, v{T+6}, v{VWR}
    s_lshr_b32 s56, s20, 2
    s_mul_i32 s26, s56, {3*128 if gu else 0}
    v_add_u32 v{VWR}, s26, v{VWR}
""")
    A0=A; A=Asm()
    nonce_put(A,T)
    rowload(A)
    NC=2*NT
    A(f"""v_and_b32 v{T}, 15, v207
    v_lshrrev_b32 v{T+1}, 4, v207
    s_and_b32 s3, s20, 3
    s_lshl_b32 s26, s3, 2
    s_mul_i32 s33, s57, 80
    s_add_u32 s26, s26, s33
    v_add_u32 v{T+2}, s26, v{T+1}
    v_mul_u32_u24 v{T+2}, {pitch}, v{T+2}
    v_lshl_add_u32 v{T+2}, v{T}, 4, v{T+2}
    s_lshl_b32 s26, s22, 1
    v_add_u32 v{T+2}, s26, v{T+2}
    v_cmp_gt_u32 vcc, {NC}, v{T}
    v_mov_b32 v{T+3}, 0x40000000
    s_cmp_eq_u32 s56, 0
    s_cselect_b32 s60, s12, s16
    s_cselect_b32 s61, s13, s17
    s_cselect_b32 s62, s14, s18
    s_mov_b32 s63, 0x20000
    v_cndmask_b32 v{T+2}, v{T+3}, v{T+2}, vcc""")
    for i in range(5): A(f"s_mov_b32 s26, {16*i*pitch}\nbuffer_load_dwordx4 {vr(WL+4*i,4)}, v{T+2}, s[60:63], s26 offen")
    A(f"""v_lshrrev_b32 v{T+2}, 1, v{T}
    v_and_b32 v{T}, 1, v{T}
    v_lshlrev_b32 v{T+2}, 7, v{T+2}
    v_lshl_add_u32 v{T+2}, v{T}, {4 if gu else 6}, v{T+2}
    v_lshrrev_b32 v{T}, 1, v{T+1}
    v_lshl_add_u32 v{T+2}, v{T}, 5, v{T+2}
    v_and_b32 v{T}, 1, v{T+1}
    v_lshl_add_u32 v{T+2}, v{T}, 3, v{T+2}
    s_lshl_b32 s26, s56, {6 if gu else 4}
    s_mul_i32 s3, s3, 768
    s_add_u32 s26, s26, s3
    s_add_u32 s26, s26, {CSB}
    v_add_u32 v{T+2}, s26, v{T+2}
    v_mov_b32 v{T+3}, {CSB+3072}
    v_cndmask_b32 v{VCR}, v{T+3}, v{T+2}, vcc
    s_mov_b32 s29, 0x3f803f80""")
    PL=A.L; A=A0
    NX=2 if gu else 1; NW_=3 if gu else 5
    def reads(F, st, ks):
        sl=st%NS; L=[]
        xs=[f"ds_read_b128 {vr(F+4*j,4)}, v{VXR+2*(st&1)+ks} offset:{((st>>1)%3)*4096+j*XW}" for j in range(NX)]
        for t in range(NW_):
            if t<NX: L.append(xs[t])
            for e in range(2):
                L.append(f"ds_read_b64_tr_b16 {vr(F+8+4*t+2*e,2)}, v{VWR} offset:{sl*WS+((4*ks+e)*NT+t)*128}")
        return L if 'noread' not in EXP else []
    def mf(F,z=False): return [f"v_mfma_f32_32x32x16_bf16 {vr(ACC+16*(NW_*j+t),16)}, {vr(F+8+4*t,4)}, {vr(F+4*j,4)}, {0 if z else vr(ACC+16*(NW_*j+t),16)}" for t in range(NW_) for j in range(NX)]
    def half(m, rd, extra):
        out=[]; per=(len(rd)+2)//3
        for i,x in enumerate(m):
            out.append(x)
            out+=rd[:per]; rd=rd[per:]
            if i>=2 and extra:
                n=(len(extra)+len(m)-1-i)//(len(m)-i); out+=extra[:n]; extra=extra[n:]
        return out+rd+extra
    SS=[int(x) for x in os.environ.get('SS','').split(',') if x]
    if 'skipdma' in EXP: dmax=lambda g: []; dmaw=lambda g: []
    if 'nomfma' in EXP: mf=lambda F,z=False: ["s_nop 0"]*(NX*NW_)
    log=['w0','w0','x0','x0','x1','x1','w1','w1']
    S0=6
    for st in range(20):
        need={f"w{st}",f"x{st&~1}",f"x{st|1}"}
        if st==S0: need.add('p')
        if st==19: need.add('q')
        if st==S0+3: need.add('n')
        if st==S0+5: need.add('s')
        last=max([i for i,x in enumerate(log) if x in need]+[-1])
        A(f"s_waitcnt vmcnt({min(63,len(log)-1-last)}) lgkmcnt(0)\ns_barrier")
        if st in SS: stamp(A,1+SS.index(st))
        dx=dmax(st+4) if st+4<20 else []; dw=dmaw(st+4) if st+4<20 else []
        ex=[]; ex2=[]
        if st==S0:
            B=Asm(); rowstat(B); ex=[l for l in B.L]
            for e in range(8):
                u=U+e
                for i in range(5):
                    r=WL+4*i+(e>>1); d=u if i==0 else T+(i&1)
                    ex.append(f"v_and_b32 v{d}, s32, v{r}" if e&1 else f"v_lshlrev_b32 v{d}, 16, v{r}")
                    if i: ex.append(f"v_add_f32 v{u}, v{u}, v{d}")
            ex.append("s_nop 1")
            ex+=[f"v_permlane32_swap_b32 v{U+i}, v{U+4+i}" for i in range(4)]+["s_nop 1"]
            ex+=[f"v_add_f32 v{U+i}, v{U+i}, v{U+4+i}" for i in range(4)]+["s_nop 1"]
            ex+=[f"v_permlane16_swap_b32 v{U+i}, v{U+2+i}" for i in range(2)]+["s_nop 1"]
            ex+=[f"v_add_f32 v{U+i}, v{U+i}, v{U+2+i}" for i in range(2)]
            ex.append(f"ds_write_b64 v{VCR}, {vr(U,2)}")
            n=(len(ex)+5)//6; parts=["\n".join(ex[i:i+n]) for i in range(0,len(ex),n)]
            ex=parts[:3]; ex2=parts[3:]
        if st==S0+1:
            ex=[f"""v_lshl_add_u32 v{U}, s20, 6, v207
            v_cmp_gt_u32 vcc, 192, v{U}
            v_lshlrev_b32 v{U}, 2, v{U}
            v_add_u32 v{U+1}, {CSB}, v{U}
            ds_read_b32 v{U+2}, v{U+1}
            ds_read_b32 v{U+3}, v{U+1} offset:768
            ds_read_b32 v{U+4}, v{U+1} offset:1536
            ds_read_b32 v{U+5}, v{U+1} offset:2304
            v_mov_b32 v{U+1}, 0x40000000
            s_lshl_b32 s26, s58, 3
            s_add_u32 s26, s26, s57
            s_mul_i32 s33, s26, 768
            s_add_u32 s33, s33, {CSP_OFF}
            v_cndmask_b32 v{U}, v{U+1}, v{U}, vcc"""]
            ex2=[f"""v_add_f32 v{U+2}, v{U+2}, v{U+3}
            v_add_f32 v{U+4}, v{U+4}, v{U+5}
            v_add_f32 v{U+2}, v{U+2}, v{U+4}
            buffer_store_dword v{U+2}, v{U}, s[64:67], s33 offen sc1"""]
        if st==S0+3:
            B=Asm(); B(f"v_readfirstlane_b32 s82, v{PF}\ns_cmp_lg_u32 s82, 0\ns_cbranch_scc1 NG{P}_done"); nonce_get(B,P,U,-1); ex=["\n".join(B.L)]
        if st==4:
            ex=[f"v_mov_b32 v{PF+1}, 0\nbuffer_load_dword v{PF}, v{PF+1}, s[68:71], 0 offen sc1"]; log+=['n']
        if st==S0+5:
            B=Asm(); flagset(B,P); ex=["\n".join(B.L)]; log+=['f']
        if st==15:
            B=Asm(); flagpoll(B,P); ex=["\n".join(B.L)]
        if st==16:
            ex=[f"""v_and_b32 v{U}, 31, v207
            v_add_u32 v{U}, s59, v{U}
            v_lshlrev_b32 v{U}, 3, v{U}
            s_mul_i32 s33, s58, {8*768}
            s_add_u32 s33, s33, {CSP_OFF}
            s_add_u32 s34, s33, {4*768}
            v_lshl_add_u32 v{U+1}, s20, 6, v207
            v_cmp_gt_u32 vcc, 192, v{U+1}
            v_lshlrev_b32 v{U+1}, 2, v{U+1}
            v_mov_b32 v{U+2}, 0x40000000
            v_add_u32 v{VCR}, {CSB}, v{U+1}
            v_mov_b32 v{U+3}, {CSB+3072}
            v_cndmask_b32 v{U+1}, v{U+2}, v{U+1}, vcc
            v_cndmask_b32 v{VCR}, v{U+3}, v{VCR}, vcc"""]
            for j in range(NX): ex.append(f"buffer_load_dwordx2 {vr(WL+4*j,2)}, v{U}, s[64:67], 0 offen offset:{256*j} sc1")
            for j in range(8): ex2.append(f"buffer_load_dword v{WL+8+j}, v{U+1}, s[64:67], s{33+(j>>2)} offen offset:{768*(j&3)} sc1")
            log+=['q']*(NX+8)
        if st==19:
            ex=[f"v_add_f32 v{WL+8+j}, v{WL+8+j}, v{WL+12+j}" for j in range(4)]+[f"v_add_f32 v{WL+8+j}, v{WL+8+j}, v{WL+10+j}" for j in range(2)]
            ex=["\n".join(ex+[f"v_add_f32 v{WL+8}, v{WL+8}, v{WL+9}",f"ds_write_b32 v{VCR}, v{WL+8}"])]
        if st==0:
            dx=dmax(2)+dmaw(2)+dmax(3)+dmaw(3); dw=dmax(4)+dmaw(4)
            log+=[f"{c}{k}" for k in (2,3,4) for c in "xxww"] if dx else []
        elif st==1:
            n=(len(PL)+3)//4; ex2=["\n".join(PL[i:i+n]) for i in range(0,len(PL),n)]
            log+=[f"x{st+4}"]*len(dx)+['p']*8+[f"w{st+4}"]*len(dw)
        elif st in (S0,S0+1): log+=[f"x{st+4}"]*len(dx)+['s']+[f"w{st+4}"]*len(dw)
        else: log+= [f"x{st+4}"]*len(dx)+[f"w{st+4}"]*len(dw)
        if st==0:
            for x in reads(FA,st,0)+dx: A(x)
        else:
            for x in half(mf(FB),reads(FA,st,0), ex+dx): A(x)
        A("s_waitcnt lgkmcnt(0)")
        for x in half(mf(FA,st==0),reads(FB,st,1), ex2+dw): A(x)
    A("s_waitcnt lgkmcnt(0)")
    for x in mf(FB): A(x)
    if not SS: stamp(A,1)
    A(f"""v_and_b32 v{T}, 31, v207
    v_lshrrev_b32 v{T+1}, 5, v207
    v_lshlrev_b32 v{T+2}, 4, v{T+1}
    s_mul_i32 s26, s56, {3*128 if gu else 0}
    s_add_u32 s26, s26, {CSB}
    v_add_u32 v{T+2}, s26, v{T+2}
    v_add_u32 v{T}, s59, v{T}
    s_waitcnt lgkmcnt(0)
    s_barrier
    """)
    if not gu: A(f"v_mul_f32 v{WL+1}, s23, v{WL+1}")
    C=FA
    def norm(t0,t1):
        for t in range(t0,t1):
            for g in range(4): A(f"ds_read_b128 {vr(C+16*(t-t0)+4*g,4)}, v{T+2} offset:{(t*32+8*g)*4}")
        n=(t1-t0)*4
        for t in range(t0,t1):
            for g in range(4):
                n-=1
                A(f"s_waitcnt lgkmcnt({n})")
                for j in range(NX):
                    for p in range(2):
                        a=ACC+16*(NW_*j+t)+4*g+2*p; c=C+16*(t-t0)+4*g+2*p
                        A(f"v_pk_fma_f32 {vr(a,2)}, {vr(c,2)}, {vr(WL+4*j,2)}, {vr(a,2)} op_sel_hi:[1,0,1]")
                    for p in range(2):
                        a=ACC+16*(NW_*j+t)+4*g+2*p
                        A(f"v_pk_mul_f32 {vr(a,2)}, {vr(a,2)}, {vr(WL+4*j,2)} op_sel:[0,1] op_sel_hi:[1,1]")
    norm(0,3)
    if not gu: norm(3,5)
    if gu:
        c0=-2*math.sqrt(2/math.pi)*math.log2(math.e); c1=c0*0.044715
        A(f"""v_lshrrev_b32 v{T+3}, 4, v{T}
        v_mul_u32_u24 v{T+3}, {74*1024}, v{T+3}
        v_and_b32 v{T}, 15, v{T}
        v_lshl_add_u32 v{T}, v{T}, 4, v{T+3}
        v_lshl_add_u32 v{T}, v{T+1}, 8, v{T}
        s_lshl_b32 s26, s22, 5
        s_mul_i32 s3, s56, 1536
        s_add_u32 s26, s26, s3
        s_mov_b32 s33, {2*74*1024}
        v_add_u32 v{T}, s26, v{T}
        s_mov_b32 s34, {hx(c1)}
        s_mov_b32 s36, 1.0
        v_mov_b32 v{T+10}, {hx(c0)}""")
        for t in range(NT):
            a=ACC+16*t; E=FA+16*(t&1); O=E+8
            for p in range(4): A(f"v_pk_mul_f32 {vr(E+2*p,2)}, {vr(a+2*p,2)}, {vr(a+2*p,2)}")
            for p in range(4): A(f"v_pk_fma_f32 {vr(E+2*p,2)}, {vr(E+2*p,2)}, s[34:35], {vr(T+10,2)} op_sel_hi:[1,0,0]")
            for p in range(4): A(f"v_pk_mul_f32 {vr(E+2*p,2)}, {vr(E+2*p,2)}, {vr(a+2*p,2)}")
            for i in range(8): A(f"v_exp_f32 v{E+i}, v{E+i}")
            for p in range(4): A(f"v_pk_mul_f32 {vr(a+2*p,2)}, {vr(a+2*p,2)}, {vr(a+8+2*p,2)}")
            for p in range(4): A(f"v_pk_add_f32 {vr(E+2*p,2)}, {vr(E+2*p,2)}, s[36:37] op_sel_hi:[1,0]")
            for i in range(8): A(f"v_rcp_f32 v{E+i}, v{E+i}")
            A("s_nop 0")
            for p in range(4): A(f"v_pk_mul_f32 {vr(a+2*p,2)}, {vr(a+2*p,2)}, {vr(E+2*p,2)}")
            for p in range(4): A(f"v_cvt_pk_bf16_f32 v{O+p}, v{a+2*p}, v{a+2*p+1}")
            if t==NT-1: k23.early_poll(A)
            A(f"buffer_store_dwordx4 {vr(O,4)}, v{T}, s[4:7], {'s33' if t>=3 else 0} offen offset:{512*(t%3)}{SM}")
    else:
        A(f"""v_and_b32 v{T}, 31, v207
        v_mul_u32_u24 v{T}, 48, v{T}
        s_mul_i32 s26, s20, 12288
        s_movk_i32 s33, 6144
        v_mad_u32_u24 v{T}, v{T+1}, s33, v{T}
        v_add_u32 v{T}, s26, v{T}
        v_lshl_add_u32 v{T+1}, v207, 4, s26
        s_mul_i32 s33, s27, {QKV_PLANE}
        s_mul_i32 s26, s59, 48
        s_add_u32 s33, s33, s26
        v_lshlrev_b32 v{T+3}, 4, v207
        v_add_u32 v{T+5}, {QKV_PLANE+512}, v{T+3}
        v_add_u32 v{T+4}, 1024, v{T+3}
        v_add_u32 v{T+6}, {QKV_PLANE-512}, v{T+3}
        v_cmp_gt_u32 vcc, 32, v207
        s_nop 1
        v_cndmask_b32 v{T+4}, v{T+6}, v{T+4}, vcc""")
        for hd in range(4):
            O=FA+12*hd
            for p in range(10): A(f"v_cvt_pk_bf16_f32 v{O+p}, v{ACC+20*hd+2*p}, v{ACC+20*hd+2*p+1}")
            A(f"v_mov_b32 v{O+10}, s29\nv_mov_b32 v{O+11}, s29")
            for p in range(3): A(f"ds_write_b128 v{T}, {vr(O+4*p,4)} offset:{hd*1536+16*p}")
        A("s_waitcnt lgkmcnt(0)")
        for i in range(12): A(f"ds_read_b128 {vr(4*i,4)}, v{T+1} offset:{1024*i}")
        for i in range(12):
            A(f"s_waitcnt lgkmcnt({11-i})\nbuffer_store_dwordx4 {vr(4*i,4)}, v{T+3+i%3}, s[4:7], s33 offen{SM}")
            if i%3==2: A(f"s_add_u32 s33, s33, {2*QKV_PLANE}")
    A("s_mov_b32 s44, 0")
    if gu: k23.early_kv(A)
    if not SS: stamp(A,2)
    A("s_branch PHB")
import struct
def hx(f): return "0x%08x"%struct.unpack('<I',struct.pack('<f',f))[0]
def gen(A):
    head(A,KNAME)
    A(f"""
    s_cmp_ge_u32 s2, 16
    s_cbranch_scc1 K1_nocpf
    s_getpc_b64 s[36:37]
    v_lshlrev_b32 v2, 6, v0
    v_min_u32 v3, {CPF_TAIL}, v2
    global_load_dword v{PF+2}, v2, s[36:37]
    v_add_u32 v3, 0x8000, v3
    global_load_dword v{PF+3}, v3, s[36:37]
    K1_nocpf:
    s_cmp_ge_u32 s2, 256
    s_cbranch_scc1 K1_exit
    """); stamp(A,0); A(f"""
    s_load_dwordx4 s[40:43], s[0:1], 0
    s_load_dwordx4 s[44:47], s[0:1], 32
    s_load_dwordx4 s[72:75], s[0:1], 64
    v_lshrrev_b32 v1, 6, v0
    v_and_b32 v207, 63, v0
    s_and_b32 s3, s2, 7
    v_readfirstlane_b32 s20, v1
    s_lshr_b32 s4, s2, 3
    s_and_b32 s5, s3, 1
    s_lshr_b32 s6, s3, 1
    s_and_b32 s7, s4, 3
    s_lshl_b32 s5, s5, 2
    s_add_u32 s5, s5, s7
    s_lshr_b32 s4, s4, 2
    s_lshl_b32 s21, s5, 8
    s_lshl_b32 s7, s20, 5
    s_add_u32 s21, s21, s7
    v_lshrrev_b32 v{T}, 3, v207
    v_add_u32 v{T}, s21, v{T}
    v_mul_u32_u24 v{T}, 1280, v{T}
    v_lshrrev_b32 v{T+1}, 4, v207
    v_xor_b32 v{T+1}, v{T+1}, v207
    v_and_b32 v{T+1}, 7, v{T+1}
    v_lshl_add_u32 v{VX}, v{T+1}, 4, v{T}
    v_xor_b32 v{VX+1}, 64, v{VX}
    v_add_u32 v{VX+1}, {8*1280}, v{VX+1}
    v_add_u32 v{VX+2}, {16*1280}, v{VX}
    v_add_u32 v{VX+3}, {16*1280}, v{VX+1}
    s_mov_b32 s50, s4
    s_mov_b32 s51, s6
    s_mov_b32 s57, s5
    s_lshl_b32 s7, s6, 3
    s_add_u32 s76, s7, s4
    s_mov_b32 s32, 0xffff0000
    s_waitcnt lgkmcnt(0)
    s_mov_b32 s48, s74
    s_mov_b32 s49, s75
    """)
    srd(A,8,40,2621440)
    A(f"""s_cmp_lt_u32 s50, 3
    s_cbranch_scc0 K1_gu
    s_mul_i32 s51, s51, 3
    s_add_u32 s51, s51, s50
    s_mul_i32 s22, s51, 160
    s_mov_b32 s58, s51
    s_mov_b32 s59, s21
    s_lshl_b32 s27, s51, 3
    s_cmp_lt_u32 s51, 4
    s_cselect_b32 s23, {hx(20**-0.5*math.log2(math.e))}, 1.0
    """)
    srd(A,12,42,640*3840); srd(A,16,42,640*3840-160,160); srd(A,4,48,96*QKV_PLANE)
    variant(A,5,False)
    A(f"""K1_gu:
    s_sub_u32 s50, s50, 3
    s_mul_i32 s52, s51, 5
    s_lshl_b32 s53, s51, 2
    s_add_u32 s53, s53, 2
    s_cmp_lt_u32 s51, 2
    s_cselect_b32 s52, s52, s53
    s_cselect_b32 s53, 5, 4
    s_cmp_ge_u32 s50, s53
    s_cbranch_scc1 K1_pack
    s_add_u32 s52, s52, s50
    s_mul_i32 s22, s52, 96
    s_add_u32 s58, s52, 12
    s_and_b32 s3, s20, 3
    s_lshl_b32 s59, s3, 6
    s_lshl_b32 s26, s57, 8
    s_add_u32 s59, s59, s26
    """)
    srd(A,12,44,640*3456); srd(A,16,46,640*3456); srd(A,4,48,HO_BYTES,HO_OFF)
    variant(A,6,True)
    pack(A)
    import k23; k23.gen(A)
    A("K1_exit:\ns_endpgm")

def pack(A):
    A("K1_pack:"); late(A)
    A(f"""
    s_load_dwordx2 s[42:43], s[0:1], 16
    s_load_dwordx2 s[44:45], s[0:1], 48
    s_sub_u32 s51, s51, 2
    s_lshl_b32 s51, s51, 3
    s_add_u32 s28, s51, s5
    s_mul_i32 s24, s20, 5120
    v_lshl_add_u32 v{T}, v207, 4, s24
    v_lshrrev_b32 v{T+1}, 4, v207
    v_lshlrev_b32 v{T+1}, 3, v{T+1}
    v_bfe_u32 v{T+2}, v207, 2, 2
    v_add_u32 v{T+1}, v{T+1}, v{T+2}
    v_mul_u32_u24 v{T+1}, 1280, v{T+1}
    v_and_b32 v{T+2}, 3, v207
    v_lshl_add_u32 v{T+1}, v{T+2}, 3, v{T+1}
    s_mul_i32 s3, s20, 160
    v_add_u32 v{T+1}, s3, v{T+1}
    s_mul_i32 s3, s20, {74*5120}
    v_lshl_add_u32 v{T+2}, v207, 4, s3
    v_add_u32 v{T+3}, 4096, v{T}
    v_add_u32 v{T+4}, 4096, v{T+2}
    s_waitcnt lgkmcnt(0)""")
    srd(A,4,48,WP_BYTES,WP_OFF)
    def issue(i):
        A(f"""s_add_u32 s27, s28, {16*i}
        s_cmp_ge_u32 s27, 54
        s_cselect_b32 s12, s42, s44
        s_cselect_b32 s13, s43, s45
        s_mov_b32 s14, {1728*1280}
        s_cselect_b32 s14, {640*1280}, s14
        s_mov_b32 s15, 0x20000
        s_cselect_b32 s3, 54, 0
        s_sub_u32 s3, s27, s3
        s_add_u32 m0, s24, {(i%3)*40960}
        s_mul_i32 s31, s3, {32*1280}""")
        for j in range(4): A(f"buffer_load_dwordx4 v{T}, s[12:15], s31 offen offset:{1024*j} lds")
        A(f"s_add_u32 m0, s24, {(i%3)*40960+4096}\ns_nop 0\nbuffer_load_dwordx4 v{T+3}, s[12:15], s31 offen lds")
    for i in range(3): issue(i)
    rowload(A); A("s_waitcnt vmcnt(0)"); rowstat(A); nonce_get(A,'P',U,-1); A("s_waitcnt vmcnt(0)\ns_barrier"); flagset(A,'P')
    A(f"v_add_u32 v{T+5}, {2*40960}, v{T+1}")
    for i in range(5):
        if i>=3: A(f"s_waitcnt vmcnt({15 if i==3 else 10})\ns_barrier")
        for t in range(5):
            for e in range(2): A(f"ds_read_b64_tr_b16 {vr(20*(i&1)+4*t+2*e,2)}, v{T+5 if i%3==2 else T+1} offset:{(i%3%2)*40960+e*4*1280+t*32}")
        A("s_waitcnt lgkmcnt(0)")
        if i<2: A("s_barrier"); issue(i+3)
        A(f"s_add_u32 s27, s28, {16*i}\ns_mul_i32 s30, s27, 5120\ns_cmp_lt_u32 s27, 74\ns_cselect_b32 s30, s30, 0x40000000")
        for t in range(4): A(f"buffer_store_dwordx4 {vr(20*(i&1)+4*t,4)}, v{T+2}, s[4:7], s30 offen offset:{1024*t}{SM}")
        A(f"buffer_store_dwordx4 {vr(20*(i&1)+16,4)}, v{T+4}, s[4:7], s30 offen{SM}")

def rowload(A):
    A(f"""s_mul_i32 s26, s73, 1280
    v_mul_u32_u24 v{XS+5}, 20, v207
    buffer_load_dwordx4 {vr(XS,4)}, v{XS+5}, s[8:11], s26 offen
    buffer_load_dword v{XS+4}, v{XS+5}, s[8:11], s26 offen offset:16""")
def rowstat(A):
    S=XS+6; Q=XS+7
    for i in range(5):
        A(f"v_lshlrev_b32 v{U}, 16, v{XS+i}\nv_and_b32 v{U+1}, s32, v{XS+i}")
        if i==0: A(f"v_add_f32 v{S}, v{U}, v{U+1}\nv_mul_f32 v{Q}, v{U}, v{U}\nv_fmac_f32 v{Q}, v{U+1}, v{U+1}")
        else: A(f"v_add_f32 v{S}, v{S}, v{U}\nv_fmac_f32 v{Q}, v{U}, v{U}\nv_add_f32 v{S}, v{S}, v{U+1}\nv_fmac_f32 v{Q}, v{U+1}, v{U+1}")
    for d in ["row_shr:1","row_shr:2","row_shr:4","row_shr:8","row_bcast:15 row_mask:0xa","row_bcast:31 row_mask:0xc"]:
        bc = " bound_ctrl:0" if "shr" in d else ""
        A(f"s_nop 1\nv_add_f32_dpp v{S}, v{S}, v{S} {d}{bc}\nv_add_f32_dpp v{Q}, v{Q}, v{Q} {d}{bc}")
    A(f"""v_mul_f32 v{S}, {hx(-1/640)}, v{S}
    v_mul_f32 v{Q}, {hx(1/640)}, v{Q}
    v_fma_f32 v{Q}, -v{S}, v{S}, v{Q}
    v_max_f32 v{Q}, 0, v{Q}
    v_add_f32 v{Q}, {hx(1e-5)}, v{Q}
    v_rsq_f32 v{Q}, v{Q}
    v_cmp_eq_u32 vcc, 63, v207
    v_mov_b32 v{U}, 0x40000000
    s_lshl_b32 s26, s73, 3
    v_cndmask_b32 v{U}, v{U}, 0, vcc
    buffer_store_dwordx2 {vr(S,2)}, v{U}, s[64:67], s26 offen sc1""")
def flagset(A,P): flag_put(A,U,207,72,FL_OFF)
def flagpoll(A,P):
    A(f"""s_cmp_lg_u32 s20, 0
    s_cbranch_scc1 FP{P}_done
    v_and_b32 v{U}, 7, v207
    s_and_b32 s26, s72, 31
    v_lshl_add_u32 v{U}, v{U}, 5, s26
    s_and_b32 s26, s72, 0xe0
    v_add_u32 v{U+1}, s26, v207
    v_cmp_gt_u32 vcc, 32, v207
    s_nop 1
    v_cndmask_b32 v{U}, v{U}, v{U+1}, vcc""")
    flag_wait(A,P,U,FL_OFF)

def late(A):
    A(f"""
    v_and_b32 v{T}, 31, v207
    v_lshrrev_b32 v{T+1}, 5, v207
    v_bfe_u32 v{T+2}, v207, 1, 3
    v_xor_b32 v{T+1}, v{T+1}, v{T+2}
    v_lshlrev_b32 v{T}, 7, v{T}
    v_lshl_add_u32 v{T}, v{T+1}, 4, v{T}
    s_mul_i32 s26, s20, {XW}
    v_add_u32 v{VXR}, s26, v{T}
    v_xor_b32 v{VXR+1}, 32, v{VXR}
    v_xor_b32 v{VXR+2}, 64, v{VXR}
    v_xor_b32 v{VXR+3}, 96, v{VXR}
""")
    srd(A,68,72,256); srd(A,64,48,CSP_OFF+30*8*768,ST_OFF)
    A("s_lshl_b32 s72, s57, 5\ns_add_u32 s72, s72, s76\ns_lshl_b32 s73, s72, 3\ns_add_u32 s73, s73, s20")
```

```python
class Asm:
    def __init__(s): s.L=[]
    def __call__(s, t):
        for l in t.strip('\n').split('\n'): s.L.append('  '+l.strip() if not l.strip().endswith(':') else l.strip())
    def txt(s): return '\n'.join(s.L)+'\n'
def vr(a,n): return f"v[{a}:{a+n-1}]" if n>1 else f"v{a}"
def sr(a,n): return f"s[{a}:{a+n-1}]" if n>1 else f"s{a}"
def srd(A, d, base, nbytes, off=0):
    if off:
        A(f"s_add_u32 s{d}, s{base}, {off}\ns_addc_u32 s{d+1}, s{base+1}, 0")
    else:
        A(f"s_mov_b32 s{d}, s{base}\ns_mov_b32 s{d+1}, s{base+1}")
    A(f"s_mov_b32 s{d+2}, {nbytes}\ns_mov_b32 s{d+3}, 0x20000")
def interleave(main, fill):
    out=[]; n=len(main); m=len(fill); k=0
    for i,x in enumerate(main):
        out.append(x)
        tgt=(m*(i+1)+n-1)//n
        while k<tgt: out.append(fill[k]); k+=1
    return out
import os
STAMP=int(os.environ.get('STAMP','0'))
def stamp(A, i):
    if STAMP: A(f"{os.environ.get('CLK','s_memrealtime')} s[{84+2*i}:{85+2*i}]")
_sc=[0]
def stamp_out(A, kid, ln, tv):
    if not STAMP: return
    _sc[0]+=1
    stamp(A,5)
    if os.environ.get('DBG'):
        A(f"s_waitcnt lgkmcnt(0)\ns_cmp_lg_u32 s20, {STAMP-1}\ns_cbranch_scc1 ST_{_sc[0]}\ns_and_b32 s75, s2, 0x7f\ns_cmp_lg_u32 s75, {os.environ['DBG']}\ns_cbranch_scc1 ST_{_sc[0]}")
        for i in range(1,6): A(f"s_sub_u32 s76, s{84+2*i}, s84\nv_writelane_b32 v{tv}, s76, {i-1}")
        A(f"s_lshr_b32 s75, s2, 7\ns_mul_i32 s75, s75, 24\ns_add_u32 s75, s75, 8\nv_lshl_add_u32 v{tv+1}, v{ln}, 2, s75\ns_mov_b64 exec, 31\nbuffer_store_dword v{tv}, v{tv+1}, s[68:71], 0 offen\nST_{_sc[0]}:")
        return
    A(f"s_load_dwordx2 s[76:77], s[0:1], 72\ns_waitcnt lgkmcnt(0)\ns_cmp_lg_u32 s20, {STAMP-1}\ns_cbranch_scc1 ST_{_sc[0]}")
    A(f"s_add_u32 s76, s76, 0x2000000\ns_addc_u32 s77, s77, 0\ns_mov_b32 s78, 0x100000\ns_mov_b32 s79, 0x20000")
    for i in range(6): A(f"v_writelane_b32 v{tv}, s{84+2*i}, {i}")
    A(f"s_lshl_b32 s75, s2, 5\ns_add_u32 s75, s75, {kid*8192}\nv_lshl_add_u32 v{tv+1}, v{ln}, 2, s75\ns_mov_b64 exec, 63\nbuffer_store_dword v{tv}, v{tv+1}, s[76:79], 0 offen\nST_{_sc[0]}:")
ST_OFF=0x1800000; FL_OFF=16384; CSP_OFF=16384+3*32768; WP_OFF=0x1400000; WP_BYTES=8*74*5120; QKV_PLANE=98304; HO_OFF=0x900000; HO_PITCH=4736; HO_BYTES=2048*4736
def desc(name, vg, sg=100):
    return f""".p2align 6
.amdhsa_kernel {name}
  .amdhsa_next_free_vgpr {vg}
  .amdhsa_next_free_sgpr {sg}
  .amdhsa_accum_offset {(vg+3)//4*4}
  .amdhsa_group_segment_fixed_size 0
  .amdhsa_kernarg_size 80
  .amdhsa_user_sgpr_count 2
  .amdhsa_user_sgpr_kernarg_segment_ptr 1
  .amdhsa_system_sgpr_workgroup_id_x 1
.end_amdhsa_kernel
"""
def head(A,name):
    A(f".globl {name}\n.p2align 8\n.type {name},@function\n{name}:")

EXP=os.environ.get('EXP','')

def nonce_put(A, t, dbg=68):
    A(f"""s_memrealtime s[80:81]
    s_or_b32 s26, s2, s20
    s_cmp_eq_u32 s26, 0
    s_cselect_b32 s26, 0, 0x40000000
    v_mov_b32 v{t+1}, 0
    s_waitcnt lgkmcnt(0)
    s_or_b32 s80, s80, 1
    v_mov_b32 v{t}, s80
    buffer_store_dword v{t}, v{t+1}, s[{dbg}:{dbg+3}], s26 offen sc1""")
def nonce_get(A, P, t, wave=0, dbg=68):
    if wave>=0: A(f"s_cmp_lg_u32 s20, {wave}\ns_cbranch_scc1 NG{P}_done")
    A(f"""v_mov_b32 v{t}, 0
    s_mov_b32 s26, 0x100000
    NG{P}_loop:
    buffer_load_dword v{t+1}, v{t}, s[{dbg}:{dbg+3}], 0 offen sc1
    s_sub_u32 s26, s26, 1
    s_cbranch_scc1 NG{P}_done
    s_waitcnt vmcnt(0)
    v_readfirstlane_b32 s82, v{t+1}
    s_cmp_eq_u32 s82, 0
    s_cbranch_scc1 NG{P}_loop
    NG{P}_done:""")
def flag_put(A, t, ln, sidx, off, wave=0, st=64):
    A(f"""v_cmp_eq_u32 vcc, 0, v{ln}
    v_mov_b32 v{t}, 0x40000000
    s_lshl_b32 s26, s{sidx}, 7
    s_add_u32 s26, s26, {off}
    s_cmp_eq_u32 s20, {wave}
    s_cselect_b32 s26, s26, 0x40000000
    v_mov_b32 v{t+1}, s82
    v_cndmask_b32 v{t}, v{t}, 0, vcc
    buffer_store_dword v{t+1}, v{t}, s[{st}:{st+3}], s26 offen sc1""")
def flag_wait(A, P, t, off, st=64):
    A(f"""v_lshlrev_b32 v{t}, 7, v{t}
    s_mov_b32 s26, 0x100000
    s_mov_b32 s83, {off}
    FP{P}_loop:
    buffer_load_dword v{t+1}, v{t}, s[{st}:{st+3}], s83 offen sc1
    s_sub_u32 s26, s26, 1
    s_cbranch_scc1 FP{P}_done
    s_waitcnt vmcnt(0)
    v_cmp_ne_u32 vcc, s82, v{t+1}
    s_cbranch_vccz FP{P}_done
    s_sleep 1
    s_branch FP{P}_loop
    FP{P}_done:""")
KNAME='parallel_sum__sliding_block__geglu_ffn__prompt_kernel'
```

```python
from common import *
import math, k23
SM=' sc1'
CPF_TAIL=3000
NS=5; XW=3*4096; WB=8*XW; WS=12416; CSB=WB+NS*WS; K1_LDS=163840
ACC=0; FA=96; FB=124; CSR=152; VSUM=158; VSQ=159; VCS=160
VX=184; VW=165; VXR=188; VWR=168; VCR=169; T=170; U=192; PF=200; VS2=163; VQ2=164
XS=152; WL=208; END=228
K1_VG=252
def variant(A, NT, gu):
    P='G' if gu else 'Q'
    pitch=3456 if gu else 3840
    RD=NT*1024+128
    A(f"""
    s_mul_i32 s24, s20, {XW}
    s_mul_i32 s25, s20, {NT*128}
    s_add_u32 s25, s25, {WB}
    v_lshrrev_b32 v{T}, 3, v207
    v_bfe_u32 v{T+1}, v207, 1, 2
    v_and_b32 v{T+2}, 1, v207
    s_lshl_b32 s26, s20, 2
    v_add_u32 v{T+1}, s26, v{T+1}
    v_mul_u32_u24 v{T+1}, {pitch}, v{T+1}
    v_lshlrev_b32 v{T}, 5, v{T}
    v_lshl_add_u32 v{T}, v{T+2}, 4, v{T}
    s_lshl_b32 s26, s22, 1
    v_add3_u32 v{VW}, v{T}, v{T+1}, s26
    """)
    ehi = 0xffff if gu else 0xff
    def dmax(g):
        n=g>>1; j0=2*(g&1)
        return [f"s_add_u32 m0, s24, {(n%3)*4096+(j0+j)*1024}\ns_movk_i32 s30, {n*128}\nbuffer_load_dwordx4 v{VX+j0+j}, s[8:11], s30 offen lds" for j in range(2)]
    def dmaw(st):
        sl=st%NS
        return [f"s_add_u32 m0, s25, {sl*WS+R*RD}\ns_mov_b32 s31, {st*32*pitch}\ns_mov_b32 exec_hi, {ehi}\nbuffer_load_dwordx4 v{VW}, s[{12+4*R}:{15+4*R}], s31 offen lds\ns_mov_b32 exec_hi, -1" for R in range(2)]
    for d in dmaw(0)+dmax(0)+dmax(1): A(d)
    A('s_barrier')
    for d in dmaw(1): A(d)
    NPF=0
    if 'dopf' in EXP:
        nl=2 if gu else 3; NPF=3 if gu else 2
        A(f"""v_lshl_add_u32 v{T}, s20, 6, v207
        s_mov_b32 s26, {(2**32+nl-1)//nl}
        v_mul_hi_u32 v{T+1}, v{T}, s26
        s_and_b32 s3, s57, 3
        s_mul_i32 s3, s3, 160
        v_mul_u32_u24 v{T+2}, {nl}, v{T+1}
        v_sub_u32 v{T+2}, v{T}, v{T+2}
        v_add_u32 v{T+1}, s3, v{T+1}
        v_mul_u32_u24 v{T+1}, {pitch}, v{T+1}
        v_lshl_add_u32 v{T+1}, v{T+2}, 7, v{T+1}
        s_lshl_b32 s26, s22, 1
        v_cmp_gt_u32 vcc, {160*nl}, v{T}
        v_mov_b32 v{T+3}, 0x40000000
        v_add_u32 v{T+1}, s26, v{T+1}
        s_mov_b32 s26, {(2**32+9)//10}
        v_cndmask_b32 v{T+1}, v{T+3}, v{T+1}, vcc
        buffer_load_dword v{PF+4}, v{T+1}, s[12:15], 0 offen
        {f'buffer_load_dword v{PF+5}, v{T+1}, s[16:19], 0 offen' if gu else ''}
        v_mul_hi_u32 v{T+1}, v{T}, s26
        s_and_b32 s3, s76, 7
        s_lshl_b32 s3, s3, 5
        s_lshl_b32 s26, s57, 8
        s_add_u32 s3, s3, s26
        v_mul_u32_u24 v{T+2}, 10, v{T+1}
        v_sub_u32 v{T+2}, v{T}, v{T+2}
        v_add_u32 v{T+1}, s3, v{T+1}
        v_mul_u32_u24 v{T+1}, 1280, v{T+1}
        v_cmp_gt_u32 vcc, 320, v{T}
        v_lshl_add_u32 v{T+1}, v{T+2}, 7, v{T+1}
        s_nop 0
        v_cndmask_b32 v{T+1}, v{T+3}, v{T+1}, vcc
        buffer_load_dword v{PF+6}, v{T+1}, s[8:11], 0 offen""")
    if 'prio' in EXP: A(f's_cmp_lt_u32 s20, 4\ns_cbranch_scc1 L{P}_np\ns_setprio 1\nL{P}_np:')
    late(A)
    if gu: A(f"""s_and_b32 s3, s20, 3
    s_lshl_b32 s3, s3, 1
    s_sub_i32 s3, s3, s20
    s_mul_i32 s3, s3, {XW}
    v_add_u32 v{VXR}, s3, v{VXR}
    v_add_u32 v{VXR+1}, s3, v{VXR+1}
    v_add_u32 v{VXR+2}, s3, v{VXR+2}
    v_add_u32 v{VXR+3}, s3, v{VXR+3}
""")
    A(f"""
    v_lshrrev_b32 v{T}, 5, v207
    v_bfe_u32 v{T+1}, v207, 4, 1
    v_and_b32 v{T+2}, 1, v207
    v_bfe_u32 v{T+3}, v207, 2, 2
    v_bfe_u32 v{T+4}, v207, 1, 1
    v_mul_u32_u24 v{T+5}, {RD}, v{T+1 if gu else T+2}
    v_lshl_add_u32 v{T+5}, v{T+2 if gu else T+1}, 4, v{T+5}
    v_lshl_add_u32 v{T+5}, v{T+3}, 5, v{T+5}
    v_lshl_add_u32 v{T+5}, v{T+4}, 3, v{T+5}
    v_mul_u32_u24 v{T+6}, {2*NT*128}, v{T}
    v_add_u32 v{VWR}, {WB}, v{T+5}
    v_add_u32 v{VWR}, v{T+6}, v{VWR}
    s_lshr_b32 s56, s20, 2
    s_mul_i32 s26, s56, {3*128 if gu else 0}
    v_add_u32 v{VWR}, s26, v{VWR}
""")
    A0=A; A=Asm()
    nonce_put(A,T)
    rowload(A)
    NC=2*NT
    A(f"""v_and_b32 v{T}, 15, v207
    v_lshrrev_b32 v{T+1}, 4, v207
    s_and_b32 s3, s20, 3
    s_lshl_b32 s26, s3, 2
    s_mul_i32 s33, s57, 80
    s_add_u32 s26, s26, s33
    v_add_u32 v{T+2}, s26, v{T+1}
    v_mul_u32_u24 v{T+2}, {pitch}, v{T+2}
    v_lshl_add_u32 v{T+2}, v{T}, 4, v{T+2}
    s_lshl_b32 s26, s22, 1
    v_add_u32 v{T+2}, s26, v{T+2}
    v_cmp_gt_u32 vcc, {NC}, v{T}
    v_mov_b32 v{T+3}, 0x40000000
    s_cmp_eq_u32 s56, 0
    s_cselect_b32 s60, s12, s16
    s_cselect_b32 s61, s13, s17
    s_cselect_b32 s62, s14, s18
    s_mov_b32 s63, 0x20000
    v_cndmask_b32 v{T+2}, v{T+3}, v{T+2}, vcc""")
    for i in range(5): A(f"s_mov_b32 s26, {16*i*pitch}\nbuffer_load_dwordx4 {vr(WL+4*i,4)}, v{T+2}, s[60:63], s26 offen")
    A(f"""v_lshrrev_b32 v{T+2}, 1, v{T}
    v_and_b32 v{T}, 1, v{T}
    v_lshlrev_b32 v{T+2}, 7, v{T+2}
    v_lshl_add_u32 v{T+2}, v{T}, {4 if gu else 6}, v{T+2}
    v_lshrrev_b32 v{T}, 1, v{T+1}
    v_lshl_add_u32 v{T+2}, v{T}, 5, v{T+2}
    v_and_b32 v{T}, 1, v{T+1}
    v_lshl_add_u32 v{T+2}, v{T}, 3, v{T+2}
    s_lshl_b32 s26, s56, {6 if gu else 4}
    s_mul_i32 s3, s3, 768
    s_add_u32 s26, s26, s3
    s_add_u32 s26, s26, {CSB}
    v_add_u32 v{T+2}, s26, v{T+2}
    v_mov_b32 v{T+3}, {CSB+3072}
    v_cndmask_b32 v{VCR}, v{T+3}, v{T+2}, vcc
    s_mov_b32 s29, 0x3f803f80""")
    PL=A.L; A=A0
    NX=2 if gu else 1; NW_=3 if gu else 5
    def reads(F, st, ks):
        sl=st%NS; L=[]
        xs=[f"ds_read_b128 {vr(F+4*j,4)}, v{VXR+2*(st&1)+ks} offset:{((st>>1)%3)*4096+j*XW}" for j in range(NX)]
        for t in range(NW_):
            if t<NX: L.append(xs[t])
            for e in range(2):
                L.append(f"ds_read_b64_tr_b16 {vr(F+8+4*t+2*e,2)}, v{VWR} offset:{sl*WS+((4*ks+e)*NT+t)*128}")
        return L if 'noread' not in EXP else []
    def mf(F,z=False): return [f"v_mfma_f32_32x32x16_bf16 {vr(ACC+16*(NW_*j+t),16)}, {vr(F+8+4*t,4)}, {vr(F+4*j,4)}, {0 if z else vr(ACC+16*(NW_*j+t),16)}" for t in range(NW_) for j in range(NX)]
    def half(m, rd, extra):
        out=[]; per=(len(rd)+2)//3
        for i,x in enumerate(m):
            out.append(x)
            out+=rd[:per]; rd=rd[per:]
            if i>=2 and extra:
                n=(len(extra)+len(m)-1-i)//(len(m)-i); out+=extra[:n]; extra=extra[n:]
        return out+rd+extra
    SS=[int(x) for x in os.environ.get('SS','').split(',') if x]
    if 'skipdma' in EXP: dmax=lambda g: []; dmaw=lambda g: []
    if 'nomfma' in EXP: mf=lambda F,z=False: ["s_nop 0"]*(NX*NW_)
    log=['w0','w0','x0','x0','x1','x1','w1','w1']+['r']*NPF
    S0=5; SP=[]
    for st in range(20):
        need={f"w{st}",f"x{st&~1}",f"x{st|1}"}
        if st==S0: need.add('p')
        if st==19: need.add('q')
        if st==S0+5: need.add('n')
        if st==S0+7: need.add('s')
        last=max([i for i,x in enumerate(log) if x in need]+[-1])
        A(f"s_waitcnt vmcnt({min(63,len(log)-1-last)}) lgkmcnt(0)\ns_barrier")
        if st in SS: stamp(A,1+SS.index(st))
        dx=dmax(st+4) if st+4<20 else []; dw=dmaw(st+4) if st+4<20 else []
        ex=[]; ex2=[]
        if st==S0:
            B=Asm(); rowstat(B); ex=[l for l in B.L]
            for e in range(8):
                u=U+e
                for i in range(5):
                    r=WL+4*i+(e>>1); d=u if i==0 else T+(i&1)
                    ex.append(f"v_and_b32 v{d}, s32, v{r}" if e&1 else f"v_lshlrev_b32 v{d}, 16, v{r}")
                    if i: ex.append(f"v_add_f32 v{u}, v{u}, v{d}")
            ex.append("s_nop 1")
            ex+=[f"v_permlane32_swap_b32 v{U+i}, v{U+4+i}" for i in range(4)]+["s_nop 1"]
            ex+=[f"v_add_f32 v{U+i}, v{U+i}, v{U+4+i}" for i in range(4)]+["s_nop 1"]
            ex+=[f"v_permlane16_swap_b32 v{U+i}, v{U+2+i}" for i in range(2)]+["s_nop 1"]
            ex+=[f"v_add_f32 v{U+i}, v{U+i}, v{U+2+i}" for i in range(2)]
            ex.append(f"ds_write_b64 v{VCR}, {vr(U,2)}")
            n=(len(ex)+23)//24; SP=["\n".join(ex[i:i+n]) for i in range(0,len(ex),n)]
            srow=max(i for i,x in enumerate(SP) if 'buffer_store' in x)
        if S0<=st<S0+4:
            k=6*(st-S0); ex=SP[k:k+3]; ex2=SP[k+3:k+6]
        if st==S0+4:
            ex=[f"""v_lshl_add_u32 v{U}, s20, 6, v207
            v_cmp_gt_u32 vcc, 192, v{U}
            v_lshlrev_b32 v{U}, 2, v{U}
            v_add_u32 v{U+1}, {CSB}, v{U}
            ds_read_b32 v{U+2}, v{U+1}
            ds_read_b32 v{U+3}, v{U+1} offset:768
            ds_read_b32 v{U+4}, v{U+1} offset:1536
            ds_read_b32 v{U+5}, v{U+1} offset:2304
            v_mov_b32 v{U+1}, 0x40000000
            s_lshl_b32 s26, s58, 3
            s_add_u32 s26, s26, s57
            s_mul_i32 s33, s26, 768
            s_add_u32 s33, s33, {CSP_OFF}
            v_cndmask_b32 v{U}, v{U+1}, v{U}, vcc"""]
            ex2=[f"""v_add_f32 v{U+2}, v{U+2}, v{U+3}
            v_add_f32 v{U+4}, v{U+4}, v{U+5}
            v_add_f32 v{U+2}, v{U+2}, v{U+4}
            buffer_store_dword v{U+2}, v{U}, s[64:67], s33 offen sc1"""]
        if st==S0+5:
            B=Asm(); B(f"v_readfirstlane_b32 s82, v{PF}\ns_cmp_lg_u32 s82, 0\ns_cbranch_scc1 NG{P}_done"); nonce_get(B,P,U,-1); ex=["\n".join(B.L)]
        if st==4:
            ex=[f"v_mov_b32 v{PF+1}, 0\nbuffer_load_dword v{PF}, v{PF+1}, s[68:71], 0 offen sc1"]; log+=['n']
        if st==S0+7:
            B=Asm(); flagset(B,P); ex=["\n".join(B.L)]; log+=['f']
        if st==15:
            B=Asm(); flagpoll(B,P); ex=["\n".join(B.L)]
        if st==16:
            ex=[f"""v_and_b32 v{U}, 31, v207
            v_add_u32 v{U}, s59, v{U}
            v_lshlrev_b32 v{U}, 3, v{U}
            s_mul_i32 s33, s58, {8*768}
            s_add_u32 s33, s33, {CSP_OFF}
            s_add_u32 s34, s33, {4*768}
            v_lshl_add_u32 v{U+1}, s20, 6, v207
            v_cmp_gt_u32 vcc, 192, v{U+1}
            v_lshlrev_b32 v{U+1}, 2, v{U+1}
            v_mov_b32 v{U+2}, 0x40000000
            v_add_u32 v{VCR}, {CSB}, v{U+1}
            v_mov_b32 v{U+3}, {CSB+3072}
            v_cndmask_b32 v{U+1}, v{U+2}, v{U+1}, vcc
            v_cndmask_b32 v{VCR}, v{U+3}, v{VCR}, vcc"""]
            for j in range(NX): ex.append(f"buffer_load_dwordx2 {vr(WL+4*j,2)}, v{U}, s[64:67], 0 offen offset:{256*j} sc1")
            for j in range(8): ex2.append(f"buffer_load_dword v{WL+8+j}, v{U+1}, s[64:67], s{33+(j>>2)} offen offset:{768*(j&3)} sc1")
            log+=['q']*(NX+8)
        if st==19:
            ex=[f"v_add_f32 v{WL+8+j}, v{WL+8+j}, v{WL+12+j}" for j in range(4)]+[f"v_add_f32 v{WL+8+j}, v{WL+8+j}, v{WL+10+j}" for j in range(2)]
            ex=["\n".join(ex+[f"v_add_f32 v{WL+8}, v{WL+8}, v{WL+9}",f"ds_write_b32 v{VCR}, v{WL+8}"])]
        if st==0:
            dx=dmax(2)+dmaw(2)+dmax(3)+dmaw(3); dw=dmax(4)+dmaw(4)
            log+=[f"{c}{k}" for k in (2,3,4) for c in "xxww"] if dx else []
        elif st==1:
            n=(len(PL)+3)//4; ex2=["\n".join(PL[i:i+n]) for i in range(0,len(PL),n)]
            log+=[f"x{st+4}"]*len(dx)+['p']*8+[f"w{st+4}"]*len(dw)
        elif st>=S0 and st in (S0+srow//6,S0+4): log+=[f"x{st+4}"]*len(dx)+['s']+[f"w{st+4}"]*len(dw)
        else: log+= [f"x{st+4}"]*len(dx)+[f"w{st+4}"]*len(dw)
        if st==0:
            for x in reads(FA,st,0)+dx: A(x)
        else:
            for x in half(mf(FB),reads(FA,st,0), ex+dx): A(x)
        A("s_waitcnt lgkmcnt(0)")
        for x in half(mf(FA,st==0),reads(FB,st,1), ex2+dw): A(x)
    A("s_waitcnt lgkmcnt(0)")
    for x in mf(FB): A(x)
    if not SS: stamp(A,1)
    A(f"""v_and_b32 v{T}, 31, v207
    v_lshrrev_b32 v{T+1}, 5, v207
    v_lshlrev_b32 v{T+2}, 4, v{T+1}
    s_mul_i32 s26, s56, {3*128 if gu else 0}
    s_add_u32 s26, s26, {CSB}
    v_add_u32 v{T+2}, s26, v{T+2}
    v_add_u32 v{T}, s59, v{T}
    s_waitcnt lgkmcnt(0)
    s_barrier
    """)
    if not gu: A(f"v_mul_f32 v{WL+1}, s23, v{WL+1}")
    C=FA
    def norm(t0,t1):
        for t in range(t0,t1):
            for g in range(4): A(f"ds_read_b128 {vr(C+16*(t-t0)+4*g,4)}, v{T+2} offset:{(t*32+8*g)*4}")
        n=(t1-t0)*4
        for t in range(t0,t1):
            for g in range(4):
                n-=1
                A(f"s_waitcnt lgkmcnt({n})")
                for j in range(NX):
                    for p in range(2):
                        a=ACC+16*(NW_*j+t)+4*g+2*p; c=C+16*(t-t0)+4*g+2*p
                        A(f"v_pk_fma_f32 {vr(a,2)}, {vr(c,2)}, {vr(WL+4*j,2)}, {vr(a,2)} op_sel_hi:[1,0,1]")
                    for p in range(2):
                        a=ACC+16*(NW_*j+t)+4*g+2*p
                        A(f"v_pk_mul_f32 {vr(a,2)}, {vr(a,2)}, {vr(WL+4*j,2)} op_sel:[0,1] op_sel_hi:[1,1]")
    if not gu: norm(0,3); norm(3,5)
    if gu:
        c0=-2*math.sqrt(2/math.pi)*math.log2(math.e); c1=c0*0.044715
        for t in range(3):
            for g in range(4): A(f"ds_read_b128 {vr(C+16*t+4*g,4)}, v{T+2} offset:{(t*32+8*g)*4}")
        A(f"""v_lshrrev_b32 v{T+3}, 4, v{T}
        v_mul_u32_u24 v{T+3}, {74*1024}, v{T+3}
        v_and_b32 v{T}, 15, v{T}
        v_lshl_add_u32 v{T}, v{T}, 4, v{T+3}
        v_lshl_add_u32 v{T}, v{T+1}, 8, v{T}
        s_lshl_b32 s26, s22, 5
        s_mul_i32 s3, s56, 1536
        s_add_u32 s26, s26, s3
        s_mov_b32 s33, {2*74*1024}
        v_add_u32 v{T}, s26, v{T}
        s_mov_b32 s34, {hx(c1)}
        v_rcp_f32 v{WL+2}, v{WL+1}
        v_rcp_f32 v{WL+6}, v{WL+5}
        v_mov_b32 v{T+10}, {hx(c0)}""")
        for t in range(3):
            A(f"s_waitcnt lgkmcnt({8-4*t})")
            for j in range(2):
                a=ACC+16*(3*j+t); E=(152,184)[j]; O=E+8
                for p in range(8): A(f"v_pk_fma_f32 {vr(a+2*p,2)}, {vr(C+16*t+2*p,2)}, {vr(WL+4*j,2)}, {vr(a+2*p,2)} op_sel_hi:[1,0,1]")
                for p in range(4): A(f"v_pk_mul_f32 {vr(a+2*p,2)}, {vr(a+2*p,2)}, {vr(WL+4*j,2)} op_sel:[0,1] op_sel_hi:[1,1]")
                for p in range(4): A(f"v_pk_mul_f32 {vr(E+2*p,2)}, {vr(a+2*p,2)}, {vr(a+2*p,2)}")
                for p in range(4): A(f"v_pk_fma_f32 {vr(E+2*p,2)}, {vr(E+2*p,2)}, s[34:35], {vr(T+10,2)} op_sel_hi:[1,0,0]")
                for p in range(4): A(f"v_pk_mul_f32 {vr(E+2*p,2)}, {vr(E+2*p,2)}, {vr(a+2*p,2)}")
                for i in range(8): A(f"v_exp_f32 v{E+i}, v{E+i}")
                for p in range(4): A(f"v_pk_mul_f32 {vr(a+2*p,2)}, {vr(a+2*p,2)}, {vr(a+8+2*p,2)}")
                for p in range(4): A(f"v_pk_fma_f32 {vr(E+2*p,2)}, {vr(E+2*p,2)}, {vr(WL+2+4*j,2)}, {vr(WL+2+4*j,2)} op_sel_hi:[1,0,0]")
                for i in range(8): A(f"v_rcp_f32 v{E+i}, v{E+i}")
                A("s_nop 0")
                for p in range(4): A(f"v_pk_mul_f32 {vr(a+2*p,2)}, {vr(a+2*p,2)}, {vr(E+2*p,2)}")
                for p in range(4): A(f"v_cvt_pk_bf16_f32 v{O+p}, v{a+2*p}, v{a+2*p+1}")
                if t==2 and j==1: k23.early_poll(A)
                A(f"buffer_store_dwordx4 {vr(O,4)}, v{T}, s[4:7], {'s33' if j else 0} offen offset:{512*t}{SM}")
    else:
        A(f"""v_and_b32 v{T}, 31, v207
        v_mul_u32_u24 v{T}, 48, v{T}
        s_mul_i32 s26, s20, 12288
        s_movk_i32 s33, 6144
        v_mad_u32_u24 v{T}, v{T+1}, s33, v{T}
        v_add_u32 v{T}, s26, v{T}
        v_lshl_add_u32 v{T+1}, v207, 4, s26
        s_mul_i32 s33, s27, {QKV_PLANE}
        s_mul_i32 s26, s59, 48
        s_add_u32 s33, s33, s26
        v_lshlrev_b32 v{T+3}, 4, v207
        v_add_u32 v{T+5}, {QKV_PLANE+512}, v{T+3}
        v_add_u32 v{T+4}, 1024, v{T+3}
        v_add_u32 v{T+6}, {QKV_PLANE-512}, v{T+3}
        v_cmp_gt_u32 vcc, 32, v207
        s_nop 1
        v_cndmask_b32 v{T+4}, v{T+6}, v{T+4}, vcc""")
        for hd in range(4):
            O=FA+12*hd
            for p in range(10): A(f"v_cvt_pk_bf16_f32 v{O+p}, v{ACC+20*hd+2*p}, v{ACC+20*hd+2*p+1}")
            A(f"v_mov_b32 v{O+10}, s29\nv_mov_b32 v{O+11}, s29")
            for p in range(3): A(f"ds_write_b128 v{T}, {vr(O+4*p,4)} offset:{hd*1536+16*p}")
        A("s_waitcnt lgkmcnt(0)")
        for i in range(12): A(f"ds_read_b128 {vr(4*i,4)}, v{T+1} offset:{1024*i}")
        for i in range(12):
            A(f"s_waitcnt lgkmcnt({11-i})\nbuffer_store_dwordx4 {vr(4*i,4)}, v{T+3+i%3}, s[4:7], s33 offen{SM}")
            if i%3==2: A(f"s_add_u32 s33, s33, {2*QKV_PLANE}")
    A("s_mov_b32 s44, 0")
    if gu: k23.early_kv(A)
    if not SS: stamp(A,2)
    A("s_branch PHB")
import struct
def hx(f): return "0x%08x"%struct.unpack('<I',struct.pack('<f',f))[0]
def gen(A):
    head(A,KNAME)
    A(f"""
    s_cmp_ge_u32 s2, 16
    s_cbranch_scc1 K1_nocpf
    s_getpc_b64 s[36:37]
    v_lshlrev_b32 v2, 6, v0
    v_min_u32 v3, {CPF_TAIL}, v2
    global_load_dword v{PF+2}, v2, s[36:37]
    v_add_u32 v3, 0x8000, v3
    global_load_dword v{PF+3}, v3, s[36:37]
    K1_nocpf:
    s_cmp_ge_u32 s2, 256
    s_cbranch_scc1 K1_exit
    """); stamp(A,0); A(f"""
    s_load_dwordx4 s[40:43], s[0:1], 0
    s_load_dwordx4 s[44:47], s[0:1], 32
    s_load_dwordx4 s[72:75], s[0:1], 64
    v_lshrrev_b32 v1, 6, v0
    v_and_b32 v207, 63, v0
    s_and_b32 s3, s2, 7
    v_readfirstlane_b32 s20, v1
    s_lshr_b32 s4, s2, 3
    s_and_b32 s5, s3, 1
    s_lshr_b32 s6, s3, 1
    s_and_b32 s7, s4, 3
    s_lshl_b32 s5, s5, 2
    s_add_u32 s5, s5, s7
    s_lshr_b32 s4, s4, 2
    s_lshl_b32 s21, s5, 8
    s_lshl_b32 s7, s20, 5
    s_add_u32 s21, s21, s7
    v_lshrrev_b32 v{T}, 3, v207
    v_add_u32 v{T}, s21, v{T}
    v_mul_u32_u24 v{T}, 1280, v{T}
    v_lshrrev_b32 v{T+1}, 4, v207
    v_xor_b32 v{T+1}, v{T+1}, v207
    v_and_b32 v{T+1}, 7, v{T+1}
    v_lshl_add_u32 v{VX}, v{T+1}, 4, v{T}
    v_xor_b32 v{VX+1}, 64, v{VX}
    v_add_u32 v{VX+1}, {8*1280}, v{VX+1}
    v_add_u32 v{VX+2}, {16*1280}, v{VX}
    v_add_u32 v{VX+3}, {16*1280}, v{VX+1}
    s_mov_b32 s50, s4
    s_mov_b32 s51, s6
    s_mov_b32 s57, s5
    s_lshl_b32 s7, s6, 3
    s_add_u32 s76, s7, s4
    s_mov_b32 s32, 0xffff0000
    s_waitcnt lgkmcnt(0)
    s_mov_b32 s48, s74
    s_mov_b32 s49, s75
    """)
    srd(A,8,40,2621440)
    A(f"""s_cmp_lt_u32 s50, 3
    s_cbranch_scc0 K1_gu
    s_mul_i32 s51, s51, 3
    s_add_u32 s51, s51, s50
    s_mul_i32 s22, s51, 160
    s_mov_b32 s58, s51
    s_mov_b32 s59, s21
    s_lshl_b32 s27, s51, 3
    s_cmp_lt_u32 s51, 4
    s_cselect_b32 s23, {hx(20**-0.5*math.log2(math.e))}, 1.0
    """)
    srd(A,12,42,640*3840); srd(A,16,42,640*3840-160,160); srd(A,4,48,96*QKV_PLANE)
    variant(A,5,False)
    A(f"""K1_gu:
    s_sub_u32 s50, s50, 3
    s_mul_i32 s52, s51, 5
    s_lshl_b32 s53, s51, 2
    s_add_u32 s53, s53, 2
    s_cmp_lt_u32 s51, 2
    s_cselect_b32 s52, s52, s53
    s_cselect_b32 s53, 5, 4
    s_cmp_ge_u32 s50, s53
    s_cbranch_scc1 K1_pack
    s_add_u32 s52, s52, s50
    s_mul_i32 s22, s52, 96
    s_add_u32 s58, s52, 12
    s_and_b32 s3, s20, 3
    s_lshl_b32 s59, s3, 6
    s_lshl_b32 s26, s57, 8
    s_add_u32 s59, s59, s26
    """)
    srd(A,12,44,640*3456); srd(A,16,46,640*3456); srd(A,4,48,HO_BYTES,HO_OFF)
    variant(A,6,True)
    pack(A)
    import k23; k23.gen(A)
    A("K1_exit:\ns_endpgm")

def pack(A):
    A("K1_pack:"); late(A)
    A(f"""
    s_load_dwordx2 s[42:43], s[0:1], 16
    s_load_dwordx2 s[44:45], s[0:1], 48
    s_sub_u32 s51, s51, 2
    s_lshl_b32 s51, s51, 3
    s_add_u32 s28, s51, s5
    s_mul_i32 s24, s20, 5120
    v_lshl_add_u32 v{T}, v207, 4, s24
    v_lshrrev_b32 v{T+1}, 4, v207
    v_lshlrev_b32 v{T+1}, 3, v{T+1}
    v_bfe_u32 v{T+2}, v207, 2, 2
    v_add_u32 v{T+1}, v{T+1}, v{T+2}
    v_mul_u32_u24 v{T+1}, 1280, v{T+1}
    v_and_b32 v{T+2}, 3, v207
    v_lshl_add_u32 v{T+1}, v{T+2}, 3, v{T+1}
    s_mul_i32 s3, s20, 160
    v_add_u32 v{T+1}, s3, v{T+1}
    s_mul_i32 s3, s20, {74*5120}
    v_lshl_add_u32 v{T+2}, v207, 4, s3
    v_add_u32 v{T+3}, 4096, v{T}
    v_add_u32 v{T+4}, 4096, v{T+2}
    s_waitcnt lgkmcnt(0)""")
    srd(A,4,48,WP_BYTES,WP_OFF)
    def issue(i):
        A(f"""s_add_u32 s27, s28, {16*i}
        s_cmp_ge_u32 s27, 54
        s_cselect_b32 s12, s42, s44
        s_cselect_b32 s13, s43, s45
        s_mov_b32 s14, {1728*1280}
        s_cselect_b32 s14, {640*1280}, s14
        s_mov_b32 s15, 0x20000
        s_cselect_b32 s3, 54, 0
        s_sub_u32 s3, s27, s3
        s_add_u32 m0, s24, {(i%3)*40960}
        s_mul_i32 s31, s3, {32*1280}""")
        for j in range(4): A(f"buffer_load_dwordx4 v{T}, s[12:15], s31 offen offset:{1024*j} lds")
        A(f"s_add_u32 m0, s24, {(i%3)*40960+4096}\ns_nop 0\nbuffer_load_dwordx4 v{T+3}, s[12:15], s31 offen lds")
    for i in range(3): issue(i)
    rowload(A); A("s_waitcnt vmcnt(0)"); rowstat(A); nonce_get(A,'P',U,-1); A("s_waitcnt vmcnt(0)\ns_barrier"); flagset(A,'P')
    A(f"v_add_u32 v{T+5}, {2*40960}, v{T+1}")
    for i in range(5):
        if i>=3: A(f"s_waitcnt vmcnt({15 if i==3 else 10})\ns_barrier")
        for t in range(5):
            for e in range(2): A(f"ds_read_b64_tr_b16 {vr(20*(i&1)+4*t+2*e,2)}, v{T+5 if i%3==2 else T+1} offset:{(i%3%2)*40960+e*4*1280+t*32}")
        A("s_waitcnt lgkmcnt(0)")
        if i<2: A("s_barrier"); issue(i+3)
        A(f"s_add_u32 s27, s28, {16*i}\ns_mul_i32 s30, s27, 5120\ns_cmp_lt_u32 s27, 74\ns_cselect_b32 s30, s30, 0x40000000")
        for t in range(4): A(f"buffer_store_dwordx4 {vr(20*(i&1)+4*t,4)}, v{T+2}, s[4:7], s30 offen offset:{1024*t}{SM}")
        A(f"buffer_store_dwordx4 {vr(20*(i&1)+16,4)}, v{T+4}, s[4:7], s30 offen{SM}")

def rowload(A):
    A(f"""s_mul_i32 s26, s73, 1280
    v_mul_u32_u24 v{XS+5}, 20, v207
    buffer_load_dwordx4 {vr(XS,4)}, v{XS+5}, s[8:11], s26 offen
    buffer_load_dword v{XS+4}, v{XS+5}, s[8:11], s26 offen offset:16""")
def rowstat(A):
    S=XS+6; Q=XS+7
    for i in range(5):
        A(f"v_lshlrev_b32 v{U}, 16, v{XS+i}\nv_and_b32 v{U+1}, s32, v{XS+i}")
        if i==0: A(f"v_add_f32 v{S}, v{U}, v{U+1}\nv_mul_f32 v{Q}, v{U}, v{U}\nv_fmac_f32 v{Q}, v{U+1}, v{U+1}")
        else: A(f"v_add_f32 v{S}, v{S}, v{U}\nv_fmac_f32 v{Q}, v{U}, v{U}\nv_add_f32 v{S}, v{S}, v{U+1}\nv_fmac_f32 v{Q}, v{U+1}, v{U+1}")
    for d in ["row_shr:1","row_shr:2","row_shr:4","row_shr:8","row_bcast:15 row_mask:0xa","row_bcast:31 row_mask:0xc"]:
        bc = " bound_ctrl:0" if "shr" in d else ""
        A(f"s_nop 1\nv_add_f32_dpp v{S}, v{S}, v{S} {d}{bc}\nv_add_f32_dpp v{Q}, v{Q}, v{Q} {d}{bc}")
    A(f"""v_mul_f32 v{S}, {hx(-1/640)}, v{S}
    v_mul_f32 v{Q}, {hx(1/640)}, v{Q}
    v_fma_f32 v{Q}, -v{S}, v{S}, v{Q}
    v_max_f32 v{Q}, 0, v{Q}
    v_add_f32 v{Q}, {hx(1e-5)}, v{Q}
    v_rsq_f32 v{Q}, v{Q}
    v_cmp_eq_u32 vcc, 63, v207
    v_mov_b32 v{U}, 0x40000000
    s_lshl_b32 s26, s73, 3
    v_cndmask_b32 v{U}, v{U}, 0, vcc
    buffer_store_dwordx2 {vr(S,2)}, v{U}, s[64:67], s26 offen sc1""")
def flagset(A,P): flag_put(A,U,207,72,FL_OFF)
def flagpoll(A,P):
    A(f"""s_cmp_lg_u32 s20, 0
    s_cbranch_scc1 FP{P}_done
    v_and_b32 v{U}, 7, v207
    s_and_b32 s26, s72, 31
    v_lshl_add_u32 v{U}, v{U}, 5, s26
    s_and_b32 s26, s72, 0xe0
    v_add_u32 v{U+1}, s26, v207
    v_cmp_gt_u32 vcc, 32, v207
    s_nop 1
    v_cndmask_b32 v{U}, v{U}, v{U+1}, vcc
    """)
    flag_wait(A,P,U,FL_OFF)

def late(A):
    A(f"""
    v_and_b32 v{T}, 31, v207
    v_lshrrev_b32 v{T+1}, 5, v207
    v_bfe_u32 v{T+2}, v207, 1, 3
    v_xor_b32 v{T+1}, v{T+1}, v{T+2}
    v_lshlrev_b32 v{T}, 7, v{T}
    v_lshl_add_u32 v{T}, v{T+1}, 4, v{T}
    s_mul_i32 s26, s20, {XW}
    v_add_u32 v{VXR}, s26, v{T}
    v_xor_b32 v{VXR+1}, 32, v{VXR}
    v_xor_b32 v{VXR+2}, 64, v{VXR}
    v_xor_b32 v{VXR+3}, 96, v{VXR}
""")
    srd(A,68,72,256); srd(A,64,48,CSP_OFF+30*8*768,ST_OFF)
    A("s_lshl_b32 s72, s57, 5\ns_add_u32 s72, s72, s76\ns_lshl_b32 s73, s72, 3\ns_add_u32 s73, s73, s20")
```

```python
from common import *
PB=int(os.environ.get('PB','0'))
def st(i): return f's_memrealtime s[{84+2*i}:{85+2*i}]\n' if (STAMP and PB) else ''
LM=os.environ.get('LM','sc1'); LN=251; FA_OFF=FL_OFF+32768; FO_OFF=FL_OFF+65536; CNT=73728; RED=81920
def att_ids(A):
    T=230
    A(f"""
    s_sub_u32 s23, s20, 4
    s_and_b32 s38, s2, 7
    s_lshr_b32 s39, s2, 3
    s_and_b32 s42, s39, 1
    s_lshl_b32 s21, s38, 1
    s_add_u32 s21, s21, s42
    s_lshr_b32 s22, s39, 1
    s_lshr_b32 s38, s21, 2
    v_and_b32 v{T}, 3, v{LN}
    v_min_u32 v{T}, 2, v{T}
    v_lshl_add_u32 v{T}, v{T}, 2, s38
    s_mov_b32 s39, {(2**32+2)//3}
    v_mul_hi_u32 v{T+1}, v{T}, s39
    v_mul_u32_u24 v{T+2}, 5, v{T+1}
    v_add_u32 v{T}, v{T}, v{T+2}
    s_lshr_b32 s39, s22, 1
    s_sub_u32 s42, s39, 1
    s_max_i32 s42, s42, 0
    s_lshl_b32 s39, s39, 5
    s_lshl_b32 s42, s42, 5
    v_add_u32 v{T+1}, s42, v{T}
    v_add_u32 v{T}, s39, v{T}
    v_cmp_gt_u32 vcc, 32, v{LN}
    s_nop 1
    v_cndmask_b32 v{T}, v{T+1}, v{T}, vcc""")
def att_kv(A,P):
    QF=214; T=230
    A(f"""{st(1)}s_lshr_b32 s38, s23, 1
    s_and_b32 s39, s23, 1
    s_lshl_b32 s39, s39, 5
    s_lshl_b32 s42, s21, 1
    s_add_u32 s38, s38, s42
    s_add_u32 s38, s38, s39
    s_add_u32 s38, s38, 32
    s_mul_i32 s38, s38, {QKV_PLANE}
    s_add_u32 s8, s48, s38
    s_addc_u32 s9, s49, 0
    s_mov_b32 s10, {QKV_PLANE}
    s_mov_b32 s11, 0x20000
    s_mul_i32 s38, s42, {QKV_PLANE}
    s_add_u32 s12, s48, s38
    s_addc_u32 s13, s49, 0
    s_mov_b32 s14, {2*QKV_PLANE}
    s_mov_b32 s15, 0x20000
    s_mul_i32 s27, s22, 6144
    s_sub_u32 s27, s27, 12288
    s_mul_i32 s28, s23, 18432
    v_lshlrev_b32 v{T}, 4, v{LN}
    s_mov_b32 s29, 0
    ATT_dma{P}:
    s_cmp_lt_i32 s27, 0
    s_cselect_b32 s30, 0x40000000, s27
    s_mov_b32 m0, s28
    s_add_u32 s27, s27, 3072
    s_add_u32 s28, s28, 3072
    buffer_load_dwordx4 v{T}, s[8:11], s30 offen sc1 lds
    buffer_load_dwordx4 v{T}, s[8:11], s30 offen offset:1024 sc1 lds
    buffer_load_dwordx4 v{T}, s[8:11], s30 offen offset:2048 sc1 lds
    s_add_u32 s29, s29, 1
    s_cmp_lt_u32 s29, 6
    s_cbranch_scc1 ATT_dma{P}
    s_lshl_b32 s25, s23, 5
    s_lshl_b32 s26, s22, 7
    s_add_u32 s26, s26, s25
    v_and_b32 v{T+1}, 31, v{LN}
    v_lshrrev_b32 v{T+2}, 5, v{LN}
    v_add_u32 v{T+3}, s26, v{T+1}
    v_mul_u32_u24 v{T+4}, 48, v{T+3}
    v_lshlrev_b32 v{T+5}, 30, v{T+2}
    v_add3_u32 v{T+5}, v{T+5}, v{T+4}, 32
    v_lshl_add_u32 v{T+4}, v{T+2}, 4, v{T+4}
    s_mov_b32 s30, {QKV_PLANE}
    buffer_load_dwordx4 {vr(QF,4)}, v{T+4}, s[12:15], 0 offen sc1
    buffer_load_dwordx2 {vr(QF+4,2)}, v{T+5}, s[12:15], 0 offen sc1
    buffer_load_dwordx4 {vr(QF+6,4)}, v{T+4}, s[12:15], s30 offen sc1
    buffer_load_dwordx2 {vr(QF+10,2)}, v{T+5}, s[12:15], s30 offen sc1""")
def early_poll(A):
    T=230
    A(f"s_cmp_lt_u32 s20, 4\ns_cbranch_scc1 EP_a\nv_mov_b32 v{LN}, v207"); att_ids(A)
    A(f"v_lshlrev_b32 v{T+1}, 7, v{T}\ns_mov_b32 s83, {FA_OFF}\nbuffer_load_dword v{T+2}, v{T+1}, s[64:67], s83 offen sc1\nEP_a:")
def early_kv(A):
    T=230
    A(f"s_cmp_lt_u32 s20, 4\ns_cbranch_scc1 EP_b\ns_waitcnt vmcnt(1)\nv_cmp_ne_u32 vcc, s82, v{T+2}\ns_cbranch_vccnz EP_b")
    att_kv(A,'b'); A("s_mov_b32 s44, 1\nEP_b:")
def attn(A):
    S=0; KF=144; O=198; QF=214; HP=226; T=230
    A(f"""ATT:
    s_setprio 3
    s_cmp_eq_u32 s44, 1
    s_cbranch_scc1 ATT_kvdone""")
    att_ids(A); flag_wait(A,'Q2',T,FA_OFF); att_kv(A,'a')
    A("ATT_kvdone:")
    srd(A,4,48,HO_BYTES,HO_OFF)
    A(f"""v_lshlrev_b32 v{T+6}, 2, v{T+2}
    v_sub_u32 v{T+6}, v{T+6}, v{T+1}
    v_add_u32 v{T+16}, 16, v{T+6}
    v_mov_b32 v{T+7}, 0xf149f2ca
    v_mov_b32 v{T+18}, 0x3f803f80
    v_mov_b32 v{T+19}, 0x3f803f80
    v_cmp_gt_u32 vcc, 32, v{LN}
    v_add_u32 v{T+8}, s25, v{T+1}
    v_mul_u32_u24 v{T+8}, 48, v{T+8}
    v_add_u32 v{T+9}, 32, v{T+8}
    v_lshl_add_u32 v{T+8}, v{T+2}, 4, v{T+8}
    v_bfe_u32 v{T+10}, v{LN}, 2, 2
    v_lshl_add_u32 v{T+10}, v{T+2}, 2, v{T+10}
    v_add_u32 v{T+10}, s25, v{T+10}
    v_mul_u32_u24 v{T+10}, 48, v{T+10}
    v_bfe_u32 v{T+11}, v{LN}, 4, 1
    v_and_b32 v{T+12}, 3, v{LN}
    v_lshl_add_u32 v{T+11}, v{T+11}, 2, v{T+12}
    v_lshlrev_b32 v{T+11}, 2, v{T+11}
    s_mov_b32 s30, 0x55543120
    s_mov_b32 s31, 0x55504231
    v_lshrrev_b32 v{T+12}, v{T+11}, s30
    v_lshrrev_b32 v{T+11}, v{T+11}, s31
    v_and_b32 v{T+12}, 15, v{T+12}
    v_and_b32 v{T+11}, 15, v{T+11}
    v_add_u32 v{T+10}, 18432, v{T+10}
    v_lshl_add_u32 v{T+17}, v{T+11}, 3, v{T+10}
    v_add_u32 v{T+17}, 36864, v{T+17}
    v_lshl_add_u32 v{T+10}, v{T+12}, 3, v{T+10}
    v_lshrrev_b32 v{T+4}, 4, v{T+3}
    v_mul_u32_u24 v{T+4}, {74*1024}, v{T+4}
    v_and_b32 v{T+3}, 15, v{T+3}
    v_lshl_add_u32 v{T+4}, v{T+3}, 4, v{T+4}
    s_mul_i32 s34, s21, 1280
    s_add_u32 s34, s34, {54*1024}
    v_add_u32 v{T+4}, s34, v{T+4}
    v_lshl_add_u32 v{T+3}, v{T+2}, 8, v{T+4}
    v_lshlrev_b32 v{T+5}, 30, v{T+2}
    v_add_u32 v{T+5}, v{T+5}, v{T+4}
    s_lshl_b32 s31, s22, 2
    s_add_u32 s31, s31, s23
    s_sub_i32 s31, 8, s31
    v_mov_b32 v{T+12}, {CNT}
    v_mov_b32 v{T+13}, 1
    s_waitcnt vmcnt(0)
    s_mov_b64 exec, 1
    ds_add_u32 v{T+12}, v{T+13}
    s_mov_b64 exec, -1
    ATT_sp:
    ds_read_b32 v{T+13}, v{T+12}
    s_waitcnt lgkmcnt(0)
    v_readfirstlane_b32 s3, v{T+13}
    s_cmp_lt_u32 s3, 4
    s_cbranch_scc1 ATT_sp
    s_mov_b32 s35, 0
    {st(2)}s_waitcnt lgkmcnt(0)
    ATT_u:""")
    for t in range(7): A(f"ds_read_b128 {vr(KF+6*t,4)}, v{T+8} offset:{t*1536}\nds_read_b64 {vr(KF+6*t+4,2)}, v{T+9} offset:{t*1536}")
    def cmp(r):
        c=8*(r>>2)+(r&3)
        return f"v_cmp_lt_i32 {sr(36+2*(r%3),2)}, {-c if c<16 else 16-c}, v{T+6 if c<16 else T+16}"
    A(cmp(0)); A(cmp(1))
    for r in range(16):
        A(cmp(r+2) if r+2<16 else "s_nop 0")
        A(f"v_cndmask_b32 v{S+r}, v{T+7}, 0, {sr(36+2*(r%3),2)}\nv_cndmask_b32 v{S+128+r}, 0, v{T+7}, {sr(36+2*(r%3),2)}")
    VF=KF; P=KF+32; M=T+12
    A(f"v_mov_b32 v{HP+1}, 0\nv_mov_b32 v{HP}, 0xf149\nv_cndmask_b32 v{HP}, 0, v{HP}, vcc")
    def mx(t):
        return [(f"v_max_f32 v{M+(p&3)}, v{S+2*p}, v{S+2*p+1}" if t==0 and p<4 else f"v_max3_f32 v{M+(p&3)}, v{S+16*t+2*p}, v{S+16*t+2*p+1}, v{M+(p&3)}") for p in range(8)]
    for t in range(7,9): A(f"ds_read_b128 {vr(KF+6*t,4)}, v{T+8} offset:{t*1536}\nds_read_b64 {vr(KF+6*t+4,2)}, v{T+9} offset:{t*1536}")
    for t in range(13):
        if t<9:
            A(f"s_waitcnt lgkmcnt({min(15,16-2*t)})")
            c = vr(S+16*t,16) if t in (0,8) else "0"
            A(f"v_mfma_f32_32x32x16_bf16 {vr(S+16*t,16)}, {vr(KF+6*t,4)}, {vr(QF,4)}, {c}")
        if t==4: A("s_nop 3")
        if t>=4:
            for x in mx(t-4)[:4]: A(x)
        if 2<=t<11:
            u=t-2
            A(f"v_mfma_f32_32x32x8_bf16 {vr(S+16*u,16)}, {vr(KF+6*u+4,2)}, {vr(QF+4,2)}, {vr(S+16*u,16)}")
            if u<8: A(f"s_cmp_le_i32 s31, {u}\ns_cbranch_scc1 ATT_v{t}\nv_mfma_f32_32x32x8_bf16 {vr(S+16*u,16)}, {vr(T+18,2)}, {vr(HP,2)}, {vr(S+16*u,16)}\ns_nop 7\nATT_v{t}:")
        if t>=11: A("s_nop 5")
        if t>=4:
            for x in mx(t-4)[4:]: A(x)
    def vread(t):
        b=VF+8*(t%4)
        return [f"ds_read_b64_tr_b16 {vr(b+4*u+2*z,2)}, v{T+10} offset:{t*1536+(16*u+8*z)*48}" for u in range(2) for z in range(2)]
    for t in range(3):
        for x in vread(t): A(x)
    A(f"""v_max3_f32 v{M}, v{M}, v{M+1}, v{M+2}
    v_max_f32 v{M}, v{M}, v{M+3}
    v_mov_b32 v{M+1}, v{M}
    s_nop 1
    v_permlane32_swap_b32 v{M}, v{M+1}
    s_nop 1
    v_max_f32 v{M}, v{M}, v{M+1}
    v_cvt_pk_bf16_f32 v{M+1}, v{M}, v{M}
    v_and_b32 v{M+1}, 0xffff0000, v{M+1}
    v_sub_f32 v{M+2}, v{M}, v{M+1}
    v_cvt_pk_bf16_f32 v{M+2}, -v{M+1}, -v{M+2}
    v_mov_b32 v{M+3}, 0
    v_cndmask_b32 v{M+2}, 0, v{M+2}, vcc
    s_nop 1""")
    def sub(t): return f"v_mfma_f32_32x32x8_bf16 {vr(S+16*t,16)}, {vr(T+18,2)}, {vr(M+2,2)}, {vr(S+16*t,16)}"
    A(sub(0)); A(sub(1)); A("s_nop 7\ns_nop 2")
    for t in range(9):
        a=S+16*t; Pb=P+8*(t&1)
        for i in range(16):
            A(f"v_exp_f32 v{a+i}, v{a+i}")
            if i==3 and t+2<9: A(sub(t+2))
        if t+3<9:
            for x in vread(t+3): A(x)
        else: A("s_nop 0")
        for p in range(8): A(f"v_cvt_pk_bf16_f32 v{Pb+p}, v{a+2*p}, v{a+2*p+1}")
        A(f"s_waitcnt lgkmcnt({4*min(3,8-t)})\ns_nop 0")
        b=VF+8*(t%4)
        for u in range(2): A(f"v_mfma_f32_32x32x16_bf16 {vr(O,16)}, {vr(b+4*u,4)}, {vr(Pb+4*u,4)}, {vr(O,16) if t or u else 0}")
    A(f"s_nop 7\ns_nop 4\nv_rcp_f32 v{M}, v{O+12}\nv_mov_b32 v{HP}, v{HP+2}\nv_mov_b32 v{HP+1}, v{HP+3}")
    for p in range(6): A(f"v_pk_mul_f32 {vr(O+2*p,2)}, {vr(O+2*p,2)}, {vr(M,2)} op_sel_hi:[1,0]")
    for p in range(4): A(f"v_cvt_pk_bf16_f32 v{P+16+p}, v{O+2*p}, v{O+2*p+1}")
    for p in range(2): A(f"v_cvt_pk_bf16_f32 v{HP+2+p}, v{O+8+2*p}, v{O+9+2*p}")
    A(f"buffer_store_dwordx4 {vr(P+16,4)}, v{T+3}, s[4:7], 0 offen sc1")
    for i in range(6): A(f"v_mov_b32 v{QF+i}, v{QF+6+i}")
    A(f"""v_add_u32 v{T+3}, 768, v{T+3}
    v_add_u32 v{T+8}, 36864, v{T+8}
    v_add_u32 v{T+9}, 36864, v{T+9}
    v_mov_b32 v{T+10}, v{T+17}
    s_add_u32 s35, s35, 1
    s_cmp_lt_u32 s35, 2
    s_cbranch_scc1 ATT_u
    {st(3)}buffer_store_dwordx4 {vr(HP,4)}, v{T+5}, s[4:7], 0 offen offset:512 sc1
    v_mov_b32 v{T+12}, {CNT}
    v_mov_b32 v{T+13}, 1
    s_waitcnt vmcnt(0)
    {st(4)}""")
    if PB: stamp_out(A,0,LN,T+14)
    A(f"""s_mov_b64 exec, 1
    ds_add_rtn_u32 v{T+13}, v{T+12}, v{T+13} offset:4
    s_mov_b64 exec, -1
    s_waitcnt lgkmcnt(0)
    v_readfirstlane_b32 s3, v{T+13}
    s_cmp_lg_u32 s3, 3
    s_cbranch_scc1 K1_exit
    s_lshl_b32 s3, s22, 4
    s_add_u32 s3, s3, s21
    s_mov_b32 s20, 4""")
    flag_put(A,T,LN,3,FO_OFF,wave=4)
    A(f"v_and_b32 v{T}, 15, v{LN}\ns_lshr_b32 s3, s50, 1\ns_lshl_b32 s3, s3, 4\nv_add_u32 v{T}, s3, v{T}")
    flag_wait(A,'O2',T,FO_OFF)
    A(f"v_mov_b32 v{T+13}, 1\nds_write_b32 v{T+12}, v{T+13} offset:8\ns_waitcnt lgkmcnt(0)\ns_endpgm")
def gen(A):
    ACC=0; F=80; XR=224; VA=234; VW=238; T=240; NSET=4
    A(f"""s_mov_b32 s44, 2
PHB:
    s_load_dwordx2 s[46:47], s[0:1], 56
    v_mov_b32 v{LN}, v207
    v_mov_b32 v{T}, {CNT}
    v_mov_b32 v{T+2}, 0
    v_mov_b32 v{T+3}, 0
    s_and_b32 s3, s2, 7
    s_lshr_b32 s4, s2, 3
    s_lshr_b32 s5, s3, 1
    s_lshl_b32 s5, s5, 3
    s_and_b32 s6, s4, 7
    s_add_u32 s50, s5, s6
    s_and_b32 s3, s3, 1
    s_lshl_b32 s3, s3, 2
    s_lshr_b32 s4, s4, 3
    s_add_u32 s51, s3, s4
    s_cmp_eq_u32 s44, 1
    s_cbranch_scc1 PHB_e
    s_waitcnt vmcnt(0)
    PHB_e:
    s_waitcnt vmcnt(22) lgkmcnt(0)
    s_barrier
    ds_write_b64 v{T}, {vr(T+2,2)}
    ds_write_b32 v{T}, v{T+2} offset:8""")
    flag_put(A,T+4,LN,72,FA_OFF)
    A("s_waitcnt lgkmcnt(0)\ns_barrier\ns_cmp_ge_u32 s20, 4\ns_cbranch_scc1 ATT")
    if not PB and not os.environ.get('SS'): stamp(A,3)
    A(f"""s_lshr_b32 s3, s50, 2
    s_lshl_b32 s3, s3, 5
    v_add_u32 v{T}, s3, v{LN}
    v_and_b32 v{T+1}, 7, v{LN}
    v_lshlrev_b32 v{T+1}, 5, v{T+1}
    v_and_b32 v{T+2}, 8, v{LN}
    v_add3_u32 v{T+1}, v{T+1}, v{T+2}, 23
    v_cmp_gt_u32 vcc, 32, v{LN}
    s_lshl_b32 s21, s50, 6
    s_mul_i32 s22, s51, 160
    v_cndmask_b32 v{T}, v{T+1}, v{T}, vcc
    s_mul_i32 s27, s20, 14
    s_cmp_eq_u32 s20, 3
    s_cselect_b32 s27, 41, s27
    s_mul_i32 s5, s50, {4*74*1024}
    s_mul_i32 s3, s51, {74*5120}
    v_lshl_add_u32 v{VA}, v{LN}, 4, s5
    v_add_u32 v{VA+1}, {74*1024}, v{VA}
    v_add_u32 v{VA+2}, {2*74*1024}, v{VA}
    v_add_u32 v{VA+3}, {3*74*1024}, v{VA}
    v_lshl_add_u32 v{VW}, v{LN}, 4, s3
    v_add_u32 v{VW+1}, 4096, v{VW}
    s_lshl_b32 s30, s27, 10
    s_mul_i32 s31, s27, 5120
    v_and_b32 v{T+5}, 15, v{LN}
    v_lshrrev_b32 v{T+4}, 4, v{LN}
    s_lshl_b32 s3, s20, 4
    s_add_u32 s3, s3, s21
    v_add_u32 v{T+5}, s3, v{T+5}
    v_mul_u32_u24 v{T+5}, 1280, v{T+5}
    v_lshl_add_u32 v{T+5}, v{T+4}, 3, v{T+5}
    v_add_u32 v{T+8}, s22, v{T+5}""")
    srd(A,4,40,2621440); srd(A,8,48,HO_BYTES,HO_OFF); srd(A,12,48,WP_BYTES,WP_OFF); srd(A,16,46,2621440)
    for t in range(5): A(f"buffer_load_dwordx2 {vr(XR+2*t,2)}, v{T+8}, s[4:7], 0 offen offset:{32*t}")
    A(f"v_mov_b32 v{T+6}, v{T+1}")
    flag_wait(A,'P2',T+6,FA_OFF)
    def ldw(i):
        b=F+36*(i%NSET)
        L=[f"buffer_load_dwordx4 {vr(b+16+4*t,4)}, v{VW+(t>>2)}, s[12:15], s31 offen offset:{(t&3)*1024} {LM}" for t in range(5)]
        if i==14: L[0]="s_mul_i32 s3, s20, 5\ns_add_u32 s3, s3, 54\ns_lshl_b32 s30, s3, 10\ns_mul_i32 s31, s3, 5120\n"+L[0]
        L[-1]+="\ns_add_u32 s31, s31, 5120"
        return L
    def lda(i):
        b=F+36*(i%NSET)
        L=[f"buffer_load_dwordx4 {vr(b+4*j,4)}, v{VA+j}, s[8:11], s30 offen {LM if i<14 else 'sc1'}" for j in range(4)]
        if i==13: L[0]="s_cmp_ge_u32 s20, 2\ns_cselect_b32 s30, 0x40000000, s30\n"+L[0]
        L[-1]+="\ns_add_u32 s30, s30, 1024"
        return L
    def ld(i):
        if i<4: return [f'ds_read_b128 {vr(F+36*(i%NSET)+16+4*t,4)}, v{T+7} offset:{i*5120+t*1024}' for t in range(5)]+lda(i)
        return ldw(i)+(lda(i) if i not in (14,15,16) else [])
    def mf(i):
        b=F+36*(i%NSET)
        return [f"v_mfma_f32_16x16x32_bf16 {vr(ACC+4*(5*j+t),4)}, {vr(b+16+4*t,4)}, {vr(b+4*j,4)}, {vr(ACC+4*(5*j+t),4) if i else 0}" for t in range(5) for j in range(4)]
    A(f"s_mul_i32 s24, s20, 20480\ns_add_u32 s24, s24, {RED}\nv_lshl_add_u32 v{T+7}, v{LN}, 4, s24")
    for i in range(4):
        A(f"s_add_u32 m0, s24, {i*5120}\ns_nop 0")
        for t in range(4): A(f"buffer_load_dwordx4 v{VW}, s[12:15], s31 offen offset:{t*1024} sc1 lds")
        A(f"s_add_u32 m0, s24, {i*5120+4096}\ns_nop 0\nbuffer_load_dwordx4 v{VW+1}, s[12:15], s31 offen sc1 lds\ns_add_u32 s31, s31, 5120")
    flag_wait(A,'H2',T,FA_OFF)
    if not os.environ.get('SS'): stamp(A,1 if PB else 4)
    for i in range(NSET-1):
        for x in ld(i): A(x)
    for i in range(19):
        nxt=i+NSET-1
        if i==14:
            A(f"""{st(2)}v_mov_b32 v{T}, {CNT}
            s_mov_b32 s26, 0x1000000
            GO_sp:
            ds_read_b32 v{T+1}, v{T} offset:8
            s_sub_u32 s26, s26, 1
            s_cbranch_scc1 GO_dn
            s_waitcnt lgkmcnt(0)
            v_readfirstlane_b32 s3, v{T+1}
            s_cmp_eq_u32 s3, 0
            s_cbranch_scc1 GO_sp
            GO_dn:
            {st(3)}""")
            for x in lda(14)+lda(15)+lda(16): A(x)
        A(f"s_waitcnt vmcnt({ {0:8,1:8,2:13,12:14,13:10,14:8,15:13}.get(i, 9*(min(19,i+NSET-1)-1-i)) }) lgkmcnt(0)")
        for x in interleave(mf(i), ld(nxt) if nxt<19 else []): A(x)
    A(f"""{st(4)}s_mul_i32 s3, s20, 20480
    s_add_u32 s3, s3, {RED}
    v_lshl_add_u32 v{T}, v{LN}, 4, s3
    s_mul_i32 s3, s20, 5120
    s_add_u32 s3, s3, {RED}
    v_lshl_add_u32 v{T+1}, v{LN}, 4, s3
    v_add_u32 v{T+2}, 40960, v{T+1}
    s_nop 4""")
    for i in range(20): A(f"ds_write_b128 v{T}, {vr(ACC+4*i,4)} offset:{i*1024}")
    A("s_waitcnt lgkmcnt(0)\ns_barrier")
    def rr(t):
        for w in range(4): A(f"ds_read_b128 {vr(16*t+4*w,4)}, v{T+1+(w>>1)} offset:{(w&1)*20480+t*1024}")
    rr(0); rr(1); rr(2)
    for t in range(5):
        b=16*t
        A(f"s_waitcnt lgkmcnt({[8,8,8,4,0][t]})")
        if t<2: rr(t+3)
        A(f"""v_lshlrev_b32 v{F}, 16, v{XR+2*t}
        v_and_b32 v{F+1}, 0xffff0000, v{XR+2*t}
        v_lshlrev_b32 v{F+2}, 16, v{XR+2*t+1}
        v_and_b32 v{F+3}, 0xffff0000, v{XR+2*t+1}""")
        for p in range(2):
            A(f"""v_pk_add_f32 {vr(b+2*p,2)}, {vr(b+2*p,2)}, {vr(b+4+2*p,2)}
            v_pk_add_f32 {vr(b+8+2*p,2)}, {vr(b+8+2*p,2)}, {vr(b+12+2*p,2)}
            v_pk_add_f32 {vr(b+2*p,2)}, {vr(b+2*p,2)}, {vr(F+2*p,2)}
            v_pk_add_f32 {vr(b+2*p,2)}, {vr(b+2*p,2)}, {vr(b+8+2*p,2)}""")
        A(f"v_cvt_pk_bf16_f32 v{b+4}, v{b}, v{b+1}\nv_cvt_pk_bf16_f32 v{b+5}, v{b+2}, v{b+3}")
        A(f"buffer_store_dwordx2 {vr(b+4,2)}, v{T+8}, s[16:19], 0 offen offset:{32*t}")
    stamp_out(A,0,LN,T+9)
    A("s_endpgm")
    attn(A)
```

```python
from common import *
PB=int(os.environ.get('PB','0'))
def st(i): return f's_memrealtime s[{84+2*i}:{85+2*i}]\n' if (STAMP and PB) else ''
LM=os.environ.get('LM','sc1'); LN=251; FA_OFF=FL_OFF+32768; FO_OFF=FL_OFF+65536; CNT=73728; RED=81920
def att_ids(A):
    T=230
    A(f"""
    s_sub_u32 s23, s20, 4
    s_and_b32 s38, s2, 7
    s_lshr_b32 s39, s2, 3
    s_and_b32 s42, s39, 1
    s_lshl_b32 s21, s38, 1
    s_add_u32 s21, s21, s42
    s_lshr_b32 s22, s39, 1
    s_lshr_b32 s38, s21, 2
    v_and_b32 v{T}, 3, v{LN}
    v_min_u32 v{T}, 2, v{T}
    v_lshl_add_u32 v{T}, v{T}, 2, s38
    s_mov_b32 s39, {(2**32+2)//3}
    v_mul_hi_u32 v{T+1}, v{T}, s39
    v_mul_u32_u24 v{T+2}, 5, v{T+1}
    v_add_u32 v{T}, v{T}, v{T+2}
    s_lshr_b32 s39, s22, 1
    s_sub_u32 s42, s39, 1
    s_max_i32 s42, s42, 0
    s_lshl_b32 s39, s39, 5
    s_lshl_b32 s42, s42, 5
    v_add_u32 v{T+1}, s42, v{T}
    v_add_u32 v{T}, s39, v{T}
    v_cmp_gt_u32 vcc, 32, v{LN}
    s_nop 1
    v_cndmask_b32 v{T}, v{T+1}, v{T}, vcc""")
def att_kv(A,P):
    QF=214; T=230
    A(f"""{st(1)}s_lshr_b32 s38, s23, 1
    s_and_b32 s39, s23, 1
    s_lshl_b32 s39, s39, 5
    s_lshl_b32 s42, s21, 1
    s_add_u32 s38, s38, s42
    s_add_u32 s38, s38, s39
    s_add_u32 s38, s38, 32
    s_mul_i32 s38, s38, {QKV_PLANE}
    s_add_u32 s8, s48, s38
    s_addc_u32 s9, s49, 0
    s_mov_b32 s10, {QKV_PLANE}
    s_mov_b32 s11, 0x20000
    s_mul_i32 s38, s42, {QKV_PLANE}
    s_add_u32 s12, s48, s38
    s_addc_u32 s13, s49, 0
    s_mov_b32 s14, {2*QKV_PLANE}
    s_mov_b32 s15, 0x20000
    s_mul_i32 s27, s22, 6144
    s_sub_u32 s27, s27, 12288
    s_mul_i32 s28, s23, 18432
    v_lshlrev_b32 v{T}, 4, v{LN}
    s_mov_b32 s29, 0
    ATT_dma{P}:
    s_cmp_lt_i32 s27, 0
    s_cselect_b32 s30, 0x40000000, s27
    s_mov_b32 m0, s28
    s_add_u32 s27, s27, 3072
    s_add_u32 s28, s28, 3072
    buffer_load_dwordx4 v{T}, s[8:11], s30 offen sc1 lds
    buffer_load_dwordx4 v{T}, s[8:11], s30 offen offset:1024 sc1 lds
    buffer_load_dwordx4 v{T}, s[8:11], s30 offen offset:2048 sc1 lds
    s_add_u32 s29, s29, 1
    s_cmp_lt_u32 s29, 6
    s_cbranch_scc1 ATT_dma{P}
    s_lshl_b32 s25, s23, 5
    s_lshl_b32 s26, s22, 7
    s_add_u32 s26, s26, s25
    v_and_b32 v{T+1}, 31, v{LN}
    v_lshrrev_b32 v{T+2}, 5, v{LN}
    v_add_u32 v{T+3}, s26, v{T+1}
    v_mul_u32_u24 v{T+4}, 48, v{T+3}
    v_lshlrev_b32 v{T+5}, 30, v{T+2}
    v_add3_u32 v{T+5}, v{T+5}, v{T+4}, 32
    v_lshl_add_u32 v{T+4}, v{T+2}, 4, v{T+4}
    s_mov_b32 s30, {QKV_PLANE}
    buffer_load_dwordx4 {vr(QF,4)}, v{T+4}, s[12:15], 0 offen sc1
    buffer_load_dwordx2 {vr(QF+4,2)}, v{T+5}, s[12:15], 0 offen sc1
    buffer_load_dwordx4 {vr(QF+6,4)}, v{T+4}, s[12:15], s30 offen sc1
    buffer_load_dwordx2 {vr(QF+10,2)}, v{T+5}, s[12:15], s30 offen sc1""")
def early_poll(A):
    T=230
    A(f"s_cmp_lt_u32 s20, 4\ns_cbranch_scc1 EP_a\nv_mov_b32 v{LN}, v207"); att_ids(A)
    A(f"v_lshlrev_b32 v{T+1}, 7, v{T}\ns_mov_b32 s83, {FA_OFF}\nbuffer_load_dword v{T+2}, v{T+1}, s[64:67], s83 offen sc1\nEP_a:")
def early_kv(A):
    T=230
    A(f"s_cmp_lt_u32 s20, 4\ns_cbranch_scc1 EP_b\ns_waitcnt vmcnt(1)\nv_cmp_ne_u32 vcc, s82, v{T+2}\ns_cbranch_vccnz EP_b")
    att_kv(A,'b'); A("s_mov_b32 s44, 1\nEP_b:")
def attn(A):
    S=0; KF=144; O=198; QF=214; HP=226; T=230
    A(f"""ATT:
    s_setprio 3
    s_cmp_eq_u32 s44, 1
    s_cbranch_scc1 ATT_kvdone""")
    att_ids(A); flag_wait(A,'Q2',T,FA_OFF); att_kv(A,'a')
    A("ATT_kvdone:")
    srd(A,4,48,HO_BYTES,HO_OFF)
    A(f"""v_lshlrev_b32 v{T+6}, 2, v{T+2}
    v_sub_u32 v{T+6}, v{T+6}, v{T+1}
    v_add_u32 v{T+16}, 16, v{T+6}
    v_mov_b32 v{T+7}, 0xf149f2ca
    v_mov_b32 v{T+18}, 0x3f803f80
    v_mov_b32 v{T+19}, 0x3f803f80
    v_cmp_gt_u32 vcc, 32, v{LN}
    v_add_u32 v{T+8}, s25, v{T+1}
    v_mul_u32_u24 v{T+8}, 48, v{T+8}
    v_add_u32 v{T+9}, 32, v{T+8}
    v_lshl_add_u32 v{T+8}, v{T+2}, 4, v{T+8}
    v_bfe_u32 v{T+10}, v{LN}, 2, 2
    v_lshl_add_u32 v{T+10}, v{T+2}, 2, v{T+10}
    v_add_u32 v{T+10}, s25, v{T+10}
    v_mul_u32_u24 v{T+10}, 48, v{T+10}
    v_bfe_u32 v{T+11}, v{LN}, 4, 1
    v_and_b32 v{T+12}, 3, v{LN}
    v_lshl_add_u32 v{T+11}, v{T+11}, 2, v{T+12}
    v_lshlrev_b32 v{T+11}, 2, v{T+11}
    s_mov_b32 s30, 0x55543120
    s_mov_b32 s31, 0x55504231
    v_lshrrev_b32 v{T+12}, v{T+11}, s30
    v_lshrrev_b32 v{T+11}, v{T+11}, s31
    v_and_b32 v{T+12}, 15, v{T+12}
    v_and_b32 v{T+11}, 15, v{T+11}
    v_add_u32 v{T+10}, 18432, v{T+10}
    v_lshl_add_u32 v{T+17}, v{T+11}, 3, v{T+10}
    v_add_u32 v{T+17}, 36864, v{T+17}
    v_lshl_add_u32 v{T+10}, v{T+12}, 3, v{T+10}
    v_lshrrev_b32 v{T+4}, 4, v{T+3}
    v_mul_u32_u24 v{T+4}, {74*1024}, v{T+4}
    v_and_b32 v{T+3}, 15, v{T+3}
    v_lshl_add_u32 v{T+4}, v{T+3}, 4, v{T+4}
    s_mul_i32 s34, s21, 1280
    s_add_u32 s34, s34, {54*1024}
    v_add_u32 v{T+4}, s34, v{T+4}
    v_lshl_add_u32 v{T+3}, v{T+2}, 8, v{T+4}
    v_lshlrev_b32 v{T+5}, 30, v{T+2}
    v_add_u32 v{T+5}, v{T+5}, v{T+4}
    s_lshl_b32 s31, s22, 2
    s_add_u32 s31, s31, s23
    s_sub_i32 s31, 8, s31
    v_mov_b32 v{T+12}, {CNT}
    v_mov_b32 v{T+13}, 1""")
    MK=[52,54,56,58,60,62,8,10,12,14,16,18,36,38,40,42]
    for r in range(16):
        c=8*(r>>2)+(r&3)
        A(f"v_cmp_lt_i32 {sr(MK[r],2)}, {-c if c<16 else 16-c}, v{T+6 if c<16 else T+16}")
    A(f"""s_waitcnt vmcnt(0)
    s_mov_b64 exec, 1
    ds_add_u32 v{T+12}, v{T+13}
    s_mov_b64 exec, -1
    ATT_sp:
    ds_read_b32 v{T+13}, v{T+12}
    s_waitcnt lgkmcnt(0)
    v_readfirstlane_b32 s3, v{T+13}
    s_cmp_lt_u32 s3, 4
    s_cbranch_scc1 ATT_sp
    s_mov_b32 s35, 0
    {st(2)}s_waitcnt lgkmcnt(0)
    ATT_u:""")
    for t in range(7): A(f"ds_read_b128 {vr(KF+6*t,4)}, v{T+8} offset:{t*1536}\nds_read_b64 {vr(KF+6*t+4,2)}, v{T+9} offset:{t*1536}")
    for r in range(16):
        A(f"v_cndmask_b32 v{S+r}, v{T+7}, 0, {sr(MK[r],2)}\nv_cndmask_b32 v{S+128+r}, 0, v{T+7}, {sr(MK[r],2)}")
    VF=KF; P=KF+32; M=T+12
    A(f"v_mov_b32 v{HP+1}, 0\nv_mov_b32 v{HP}, 0xf149\nv_cndmask_b32 v{HP}, 0, v{HP}, vcc")
    def mx(t):
        return [(f"v_max_f32 v{M+(p&3)}, v{S+2*p}, v{S+2*p+1}" if t==0 and p<4 else f"v_max3_f32 v{M+(p&3)}, v{S+16*t+2*p}, v{S+16*t+2*p+1}, v{M+(p&3)}") for p in range(8)]
    for t in range(7,9): A(f"ds_read_b128 {vr(KF+6*t,4)}, v{T+8} offset:{t*1536}\nds_read_b64 {vr(KF+6*t+4,2)}, v{T+9} offset:{t*1536}")
    for t in range(13):
        if t<9:
            A(f"s_waitcnt lgkmcnt({min(15,16-2*t)})")
            c = vr(S+16*t,16) if t in (0,8) else "0"
            A(f"v_mfma_f32_32x32x16_bf16 {vr(S+16*t,16)}, {vr(KF+6*t,4)}, {vr(QF,4)}, {c}")
        if t==4: A("s_nop 3")
        if t>=4:
            for x in mx(t-4)[:4]: A(x)
        if 2<=t<11:
            u=t-2
            A(f"v_mfma_f32_32x32x8_bf16 {vr(S+16*u,16)}, {vr(KF+6*u+4,2)}, {vr(QF+4,2)}, {vr(S+16*u,16)}")
            if u<8: A(f"s_cmp_le_i32 s31, {u}\ns_cbranch_scc1 ATT_v{t}\nv_mfma_f32_32x32x8_bf16 {vr(S+16*u,16)}, {vr(T+18,2)}, {vr(HP,2)}, {vr(S+16*u,16)}\ns_nop 7\nATT_v{t}:")
        if t>=11: A("s_nop 5")
        if t>=4:
            for x in mx(t-4)[4:]: A(x)
    def vread(t):
        b=VF+8*(t%4)
        return [f"ds_read_b64_tr_b16 {vr(b+4*u+2*z,2)}, v{T+10} offset:{t*1536+(16*u+8*z)*48}" for u in range(2) for z in range(2)]
    for t in range(3):
        for x in vread(t): A(x)
    A(f"""v_max3_f32 v{M}, v{M}, v{M+1}, v{M+2}
    v_max_f32 v{M}, v{M}, v{M+3}
    v_mov_b32 v{M+1}, v{M}
    s_nop 1
    v_permlane32_swap_b32 v{M}, v{M+1}
    s_nop 1
    v_max_f32 v{M}, v{M}, v{M+1}
    v_cvt_pk_bf16_f32 v{M+1}, v{M}, v{M}
    v_and_b32 v{M+1}, 0xffff0000, v{M+1}
    v_sub_f32 v{M+2}, v{M}, v{M+1}
    v_cvt_pk_bf16_f32 v{M+2}, -v{M+1}, -v{M+2}
    v_mov_b32 v{M+3}, 0
    v_cndmask_b32 v{M+2}, 0, v{M+2}, vcc
    s_nop 1""")
    def sub(t): return f"v_mfma_f32_32x32x8_bf16 {vr(S+16*t,16)}, {vr(T+18,2)}, {vr(M+2,2)}, {vr(S+16*t,16)}"
    A(sub(0)); A(sub(1)); A("s_nop 7\ns_nop 2")
    for t in range(9):
        a=S+16*t; Pb=P+8*(t&1)
        for i in range(16):
            A(f"v_exp_f32 v{a+i}, v{a+i}")
            if i==3 and t+2<9: A(sub(t+2))
        if t+3<9:
            for x in vread(t+3): A(x)
        else: A("s_nop 0")
        for p in range(8): A(f"v_cvt_pk_bf16_f32 v{Pb+p}, v{a+2*p}, v{a+2*p+1}")
        A(f"s_waitcnt lgkmcnt({4*min(3,8-t)})\ns_nop 0")
        b=VF+8*(t%4)
        for u in range(2): A(f"v_mfma_f32_32x32x16_bf16 {vr(O,16)}, {vr(b+4*u,4)}, {vr(Pb+4*u,4)}, {vr(O,16) if t or u else 0}")
    A(f"s_nop 7\ns_nop 4\nv_rcp_f32 v{M}, v{O+12}\nv_mov_b32 v{HP}, v{HP+2}\nv_mov_b32 v{HP+1}, v{HP+3}")
    for p in range(6): A(f"v_pk_mul_f32 {vr(O+2*p,2)}, {vr(O+2*p,2)}, {vr(M,2)} op_sel_hi:[1,0]")
    for p in range(4): A(f"v_cvt_pk_bf16_f32 v{P+16+p}, v{O+2*p}, v{O+2*p+1}")
    for p in range(2): A(f"v_cvt_pk_bf16_f32 v{HP+2+p}, v{O+8+2*p}, v{O+9+2*p}")
    A(f"buffer_store_dwordx4 {vr(P+16,4)}, v{T+3}, s[4:7], 0 offen sc1")
    for i in range(6): A(f"v_mov_b32 v{QF+i}, v{QF+6+i}")
    A(f"""v_add_u32 v{T+3}, 768, v{T+3}
    v_add_u32 v{T+8}, 36864, v{T+8}
    v_add_u32 v{T+9}, 36864, v{T+9}
    v_mov_b32 v{T+10}, v{T+17}
    s_add_u32 s35, s35, 1
    s_cmp_lt_u32 s35, 2
    s_cbranch_scc1 ATT_u
    {st(3)}buffer_store_dwordx4 {vr(HP,4)}, v{T+5}, s[4:7], 0 offen offset:512 sc1
    v_mov_b32 v{T+12}, {CNT}
    v_mov_b32 v{T+13}, 1
    s_waitcnt vmcnt(0)
    {st(4)}""")
    if PB: stamp_out(A,0,LN,T+14)
    A(f"""s_mov_b64 exec, 1
    ds_add_rtn_u32 v{T+13}, v{T+12}, v{T+13} offset:4
    s_mov_b64 exec, -1
    s_waitcnt lgkmcnt(0)
    v_readfirstlane_b32 s3, v{T+13}
    s_cmp_lg_u32 s3, 3
    s_cbranch_scc1 K1_exit
    s_lshl_b32 s3, s22, 4
    s_add_u32 s3, s3, s21
    s_mov_b32 s20, 4""")
    flag_put(A,T,LN,3,FO_OFF,wave=4)
    A(f"v_and_b32 v{T}, 15, v{LN}\ns_lshr_b32 s3, s50, 1\ns_lshl_b32 s3, s3, 4\nv_add_u32 v{T}, s3, v{T}")
    flag_wait(A,'O2',T,FO_OFF)
    A(f"v_mov_b32 v{T+13}, 1\nds_write_b32 v{T+12}, v{T+13} offset:8\ns_waitcnt lgkmcnt(0)\ns_endpgm")
def gen(A):
    ACC=0; F=80; XR=224; VA=234; VW=238; T=240; NSET=4
    A(f"""s_mov_b32 s44, 2
PHB:
    s_load_dwordx2 s[46:47], s[0:1], 56
    v_mov_b32 v{LN}, v207
    v_mov_b32 v{T}, {CNT}
    v_mov_b32 v{T+2}, 0
    v_mov_b32 v{T+3}, 0
    s_and_b32 s3, s2, 7
    s_lshr_b32 s4, s2, 3
    s_lshr_b32 s5, s3, 1
    s_lshl_b32 s5, s5, 3
    s_and_b32 s6, s4, 7
    s_add_u32 s50, s5, s6
    s_and_b32 s3, s3, 1
    s_lshl_b32 s3, s3, 2
    s_lshr_b32 s4, s4, 3
    s_add_u32 s51, s3, s4
    s_cmp_eq_u32 s44, 1
    s_cbranch_scc1 PHB_e
    s_waitcnt vmcnt(0)
    PHB_e:
    s_waitcnt vmcnt(22) lgkmcnt(0)
    s_barrier
    ds_write_b64 v{T}, {vr(T+2,2)}
    ds_write_b32 v{T}, v{T+2} offset:8""")
    flag_put(A,T+4,LN,72,FA_OFF)
    A("s_waitcnt lgkmcnt(0)\ns_barrier\ns_cmp_ge_u32 s20, 4\ns_cbranch_scc1 ATT")
    if not PB and not os.environ.get('SS'): stamp(A,3)
    A(f"""s_lshr_b32 s3, s50, 2
    s_lshl_b32 s3, s3, 5
    v_add_u32 v{T}, s3, v{LN}
    v_and_b32 v{T+1}, 7, v{LN}
    v_lshlrev_b32 v{T+1}, 5, v{T+1}
    v_and_b32 v{T+2}, 8, v{LN}
    v_add3_u32 v{T+1}, v{T+1}, v{T+2}, 23
    v_cmp_gt_u32 vcc, 32, v{LN}
    s_lshl_b32 s21, s50, 6
    s_mul_i32 s22, s51, 160
    v_cndmask_b32 v{T}, v{T+1}, v{T}, vcc
    s_mul_i32 s27, s20, 14
    s_cmp_eq_u32 s20, 3
    s_cselect_b32 s27, 41, s27
    s_mul_i32 s5, s50, {4*74*1024}
    s_mul_i32 s3, s51, {74*5120}
    v_lshl_add_u32 v{VA}, v{LN}, 4, s5
    v_add_u32 v{VA+1}, {74*1024}, v{VA}
    v_add_u32 v{VA+2}, {2*74*1024}, v{VA}
    v_add_u32 v{VA+3}, {3*74*1024}, v{VA}
    v_lshl_add_u32 v{VW}, v{LN}, 4, s3
    v_add_u32 v{VW+1}, 4096, v{VW}
    s_lshl_b32 s30, s27, 10
    s_mul_i32 s31, s27, 5120
    v_and_b32 v{T+5}, 15, v{LN}
    v_lshrrev_b32 v{T+4}, 4, v{LN}
    s_lshl_b32 s3, s20, 4
    s_add_u32 s3, s3, s21
    v_add_u32 v{T+5}, s3, v{T+5}
    v_mul_u32_u24 v{T+5}, 1280, v{T+5}
    v_lshl_add_u32 v{T+5}, v{T+4}, 3, v{T+5}
    v_add_u32 v{T+8}, s22, v{T+5}""")
    srd(A,4,40,2621440); srd(A,8,48,HO_BYTES,HO_OFF); srd(A,12,48,WP_BYTES,WP_OFF); srd(A,16,46,2621440)
    for t in range(5): A(f"buffer_load_dwordx2 {vr(XR+2*t,2)}, v{T+8}, s[4:7], 0 offen offset:{32*t}")
    if 'nokvw' not in EXP: A(f"""v_mov_b32 v{T+6}, {CNT}
    KV_sp:
    ds_read_b32 v{T+7}, v{T+6}
    s_waitcnt lgkmcnt(0)
    v_readfirstlane_b32 s3, v{T+7}
    s_cmp_ge_u32 s3, 4
    s_cbranch_scc1 KV_dn
    s_sleep 1
    s_branch KV_sp
    KV_dn:""")
    A(f"v_mov_b32 v{T+6}, v{T+1}")
    flag_wait(A,'P2',T+6,FA_OFF)
    NA=int(os.environ.get('NA','4')); WF=F+16*NA
    def lda(i):
        b=F+16*(i%NA)
        L=[f"buffer_load_dwordx4 {vr(b+4*j,4)}, v{VA+j}, s[8:11], s30 offen sc1" for j in range(4)]
        if i==13: L[0]="s_cmp_ge_u32 s20, 2\ns_cselect_b32 s30, 0x40000000, s30\n"+L[0]
        L[-1]+="\ns_add_u32 s30, s30, 1024"
        return L
    def ldl(i): return [f'ds_read_b128 {vr(WF+20*(i&1)+4*t,4)}, v{T+7} offset:{(i%4)*5120+t*1024}' for t in range(5)]
    def refill(i):
        k=i%4
        L=[f"s_add_u32 m0, s24, {k*5120}\n{'s_mov_b32 s31, s35' if i==14 else 's_nop 0'}\nbuffer_load_dwordx4 v{VW}, s[12:15], s31 offen sc1 lds"]
        L+=[f"buffer_load_dwordx4 v{VW}, s[12:15], s31 offen offset:{t*1024} sc1 lds" for t in range(1,4)]
        return L+[f"s_add_u32 m0, s24, {k*5120+4096}\ns_nop 0\nbuffer_load_dwordx4 v{VW+1}, s[12:15], s31 offen sc1 lds\ns_add_u32 s31, s31, 5120"]
    def mf(i):
        return [f"v_mfma_f32_16x16x32_bf16 {vr(ACC+4*(5*j+t),4)}, {vr(WF+20*(i&1)+4*t,4)}, {vr(F+16*(i%NA)+4*j,4)}, {vr(ACC+4*(5*j+t),4) if i else 0}" for t in range(5) for j in range(4)]
    if 'dowp' in EXP: A(f"""s_and_b32 s3, s50, 7
    s_mul_i32 s3, s3, 370
    s_mul_i32 s24, s20, 93
    s_add_u32 s3, s3, s24
    s_lshl_b32 s3, s3, 7
    s_mul_i32 s24, s51, {74*5120}
    s_add_u32 s3, s3, s24
    v_lshlrev_b32 v{F}, 7, v{LN}
    v_min_u32 v{F+1}, 28, v{LN}
    v_lshlrev_b32 v{F+1}, 7, v{F+1}
    v_add_u32 v{F+1}, 8192, v{F+1}
    buffer_load_dword v{F+2}, v{F}, s[12:15], s3 offen sc1
    buffer_load_dword v{F+3}, v{F+1}, s[12:15], s3 offen sc1""")
    A(f"s_mul_i32 s24, s20, 20480\ns_add_u32 s24, s24, {RED}\nv_lshl_add_u32 v{T+7}, v{LN}, 4, s24")
    for i in range(4):
        A(f"s_add_u32 m0, s24, {i*5120}\ns_nop 0")
        for t in range(4): A(f"buffer_load_dwordx4 v{VW}, s[12:15], s31 offen offset:{t*1024} sc1 lds")
        A(f"s_add_u32 m0, s24, {i*5120+4096}\ns_nop 0\nbuffer_load_dwordx4 v{VW+1}, s[12:15], s31 offen sc1 lds\ns_add_u32 s31, s31, 5120")
    flag_wait(A,'H2',T,FA_OFF)
    if not os.environ.get('SS'): stamp(A,1 if PB else 4)
    A("s_mul_i32 s33, s20, 5\ns_add_u32 s33, s33, 54\ns_mul_i32 s35, s33, 5120")
    log=[]
    for x in ldl(0): A(x)
    for i in range(NA-1):
        log+=[f"A{i}"]*4
        for x in lda(i): A(x)
    for i in range(19):
        if i==14:
            A(f"""{st(2)}v_mov_b32 v{T}, {CNT}
            s_mov_b32 s26, 0x1000000
            GO_sp:
            ds_read_b32 v{T+1}, v{T} offset:8
            s_sub_u32 s26, s26, 1
            s_cbranch_scc1 GO_dn
            s_waitcnt lgkmcnt(0)
            v_readfirstlane_b32 s3, v{T+1}
            s_cmp_lg_u32 s3, 0
            s_cbranch_scc1 GO_dn
            s_sleep 1
            s_branch GO_sp
            GO_dn:
            {st(3)}s_lshl_b32 s30, s33, 10""")
            for k in range(14,min(19,14+NA-1)):
                for x in lda(k): A(x)
                log+=[f"A{k}"]*4
        need={f"A{i}",f"W{i+1}"}
        last=max(k for k,x in enumerate(log) if x in need)
        A(f"s_waitcnt vmcnt({len(log)-1-last}) lgkmcnt(0)")
        c=ldl(i+1) if i<18 else []
        if i+4<19: c=c+refill(i+4); log+=[f"W{i+4}"]*5
        if i+NA-1<14 or (i>=14 and i+NA-1<19): c=c+lda(i+NA-1); log+=[f"A{i+NA-1}"]*4
        for x in interleave(mf(i), c): A(x)
    A(f"""{st(4)}s_mul_i32 s3, s20, 20480
    s_add_u32 s3, s3, {RED}
    v_lshl_add_u32 v{T}, v{LN}, 4, s3
    s_mul_i32 s3, s20, 5120
    s_add_u32 s3, s3, {RED}
    v_lshl_add_u32 v{T+1}, v{LN}, 4, s3
    v_add_u32 v{T+2}, 40960, v{T+1}
    s_nop 4""")
    for i in range(20): A(f"ds_write_b128 v{T}, {vr(ACC+4*i,4)} offset:{i*1024}")
    A("s_waitcnt lgkmcnt(0)\ns_barrier")
    def rr(t):
        for w in range(4): A(f"ds_read_b128 {vr(16*t+4*w,4)}, v{T+1+(w>>1)} offset:{(w&1)*20480+t*1024}")
    rr(0); rr(1); rr(2)
    for t in range(5):
        b=16*t
        A(f"s_waitcnt lgkmcnt({[8,8,8,4,0][t]})")
        if t<2: rr(t+3)
        A(f"""v_lshlrev_b32 v{F}, 16, v{XR+2*t}
        v_and_b32 v{F+1}, 0xffff0000, v{XR+2*t}
        v_lshlrev_b32 v{F+2}, 16, v{XR+2*t+1}
        v_and_b32 v{F+3}, 0xffff0000, v{XR+2*t+1}""")
        for p in range(2):
            A(f"""v_pk_add_f32 {vr(b+2*p,2)}, {vr(b+2*p,2)}, {vr(b+4+2*p,2)}
            v_pk_add_f32 {vr(b+8+2*p,2)}, {vr(b+8+2*p,2)}, {vr(b+12+2*p,2)}
            v_pk_add_f32 {vr(b+2*p,2)}, {vr(b+2*p,2)}, {vr(F+2*p,2)}
            v_pk_add_f32 {vr(b+2*p,2)}, {vr(b+2*p,2)}, {vr(b+8+2*p,2)}""")
        A(f"v_cvt_pk_bf16_f32 v{b+4}, v{b}, v{b+1}\nv_cvt_pk_bf16_f32 v{b+5}, v{b+2}, v{b+3}")
        A(f"buffer_store_dwordx2 {vr(b+4,2)}, v{T+8}, s[16:19], 0 offen offset:{32*t}")
    stamp_out(A,0,LN,T+9)
    A("s_endpgm")
    attn(A)
```

```python
from common import *
import math, k23
SM=' sc1'
CPF_TAIL=4900
NS=5; XW=3*4096; WB=8*XW; WS=12416; CSB=WB+NS*WS; K1_LDS=163840
ACC=0; FA=96; FB=124; CSR=152; VSUM=158; VSQ=159; VCS=160
VX=184; VW=165; VXR=188; VWR=168; VCR=169; T=170; U=192; PF=200; VS2=163; VQ2=164
XS=152; WL=208; END=228
K1_VG=252
def variant(A, NT, gu):
    P='G' if gu else 'Q'
    pitch=3456 if gu else 3840
    RD=NT*1024+128
    A(f"""
    s_mul_i32 s24, s20, {XW}
    s_mul_i32 s25, s20, {NT*128}
    s_add_u32 s25, s25, {WB}
    v_lshrrev_b32 v{T}, 3, v207
    v_bfe_u32 v{T+1}, v207, 1, 2
    v_and_b32 v{T+2}, 1, v207
    s_lshl_b32 s26, s20, 2
    v_add_u32 v{T+1}, s26, v{T+1}
    v_mul_u32_u24 v{T+1}, {pitch}, v{T+1}
    v_lshlrev_b32 v{T}, 5, v{T}
    v_lshl_add_u32 v{T}, v{T+2}, 4, v{T}
    s_lshl_b32 s26, s22, 1
    v_add3_u32 v{VW}, v{T}, v{T+1}, s26
    """)
    ehi = 0xffff if gu else 0xff
    def dmax(g):
        n=g>>1; j0=2*(g&1)
        return [f"s_add_u32 m0, s24, {(n%3)*4096+(j0+j)*1024}\ns_movk_i32 s30, {n*128}\nbuffer_load_dwordx4 v{VX+j0+j}, s[8:11], s30 offen lds" for j in range(2)]
    def dmaw(st):
        sl=st%NS
        return [f"s_add_u32 m0, s25, {sl*WS+R*RD}\ns_mov_b32 s31, {st*32*pitch}\ns_mov_b32 exec_hi, {ehi}\nbuffer_load_dwordx4 v{VW}, s[{12+4*R}:{15+4*R}], s31 offen lds\ns_mov_b32 exec_hi, -1" for R in range(2)]
    for d in dmaw(0)+dmax(0)+dmax(1): A(d)
    A('s_barrier')
    for d in dmaw(1): A(d)
    NPF=0
    if 'dopf' in EXP:
        nl=2 if gu else 3; NPF=3 if gu else 2
        A(f"""v_lshl_add_u32 v{T}, s20, 6, v207
        s_mov_b32 s26, {(2**32+nl-1)//nl}
        v_mul_hi_u32 v{T+1}, v{T}, s26
        s_and_b32 s3, s57, 3
        s_mul_i32 s3, s3, 160
        v_mul_u32_u24 v{T+2}, {nl}, v{T+1}
        v_sub_u32 v{T+2}, v{T}, v{T+2}
        v_add_u32 v{T+1}, s3, v{T+1}
        v_mul_u32_u24 v{T+1}, {pitch}, v{T+1}
        v_lshl_add_u32 v{T+1}, v{T+2}, 7, v{T+1}
        s_lshl_b32 s26, s22, 1
        v_cmp_gt_u32 vcc, {160*nl}, v{T}
        v_mov_b32 v{T+3}, 0x40000000
        v_add_u32 v{T+1}, s26, v{T+1}
        s_mov_b32 s26, {(2**32+9)//10}
        v_cndmask_b32 v{T+1}, v{T+3}, v{T+1}, vcc
        buffer_load_dword v{PF+4}, v{T+1}, s[12:15], 0 offen
        {f'buffer_load_dword v{PF+5}, v{T+1}, s[16:19], 0 offen' if gu else ''}
        v_mul_hi_u32 v{T+1}, v{T}, s26
        s_and_b32 s3, s76, 7
        s_lshl_b32 s3, s3, 5
        s_lshl_b32 s26, s57, 8
        s_add_u32 s3, s3, s26
        v_mul_u32_u24 v{T+2}, 10, v{T+1}
        v_sub_u32 v{T+2}, v{T}, v{T+2}
        v_add_u32 v{T+1}, s3, v{T+1}
        v_mul_u32_u24 v{T+1}, 1280, v{T+1}
        v_cmp_gt_u32 vcc, 320, v{T}
        v_lshl_add_u32 v{T+1}, v{T+2}, 7, v{T+1}
        s_nop 0
        v_cndmask_b32 v{T+1}, v{T+3}, v{T+1}, vcc
        buffer_load_dword v{PF+6}, v{T+1}, s[8:11], 0 offen""")
    if 'prio' in EXP: A(f's_cmp_lt_u32 s20, 4\ns_cbranch_scc1 L{P}_np\ns_setprio 1\nL{P}_np:')
    late(A)
    if gu: A(f"""s_and_b32 s3, s20, 3
    s_lshl_b32 s3, s3, 1
    s_sub_i32 s3, s3, s20
    s_mul_i32 s3, s3, {XW}
    v_add_u32 v{VXR}, s3, v{VXR}
    v_add_u32 v{VXR+1}, s3, v{VXR+1}
    v_add_u32 v{VXR+2}, s3, v{VXR+2}
    v_add_u32 v{VXR+3}, s3, v{VXR+3}
""")
    A(f"""
    v_lshrrev_b32 v{T}, 5, v207
    v_bfe_u32 v{T+1}, v207, 4, 1
    v_and_b32 v{T+2}, 1, v207
    v_bfe_u32 v{T+3}, v207, 2, 2
    v_bfe_u32 v{T+4}, v207, 1, 1
    v_mul_u32_u24 v{T+5}, {RD}, v{T+1 if gu else T+2}
    v_lshl_add_u32 v{T+5}, v{T+2 if gu else T+1}, 4, v{T+5}
    v_lshl_add_u32 v{T+5}, v{T+3}, 5, v{T+5}
    v_lshl_add_u32 v{T+5}, v{T+4}, 3, v{T+5}
    v_mul_u32_u24 v{T+6}, {2*NT*128}, v{T}
    v_add_u32 v{VWR}, {WB}, v{T+5}
    v_add_u32 v{VWR}, v{T+6}, v{VWR}
    s_lshr_b32 s56, s20, 2
    s_mul_i32 s26, s56, {3*128 if gu else 0}
    v_add_u32 v{VWR}, s26, v{VWR}
""")
    A0=A; A=Asm()
    nonce_put(A,T)
    rowload(A)
    NC=2*NT
    A(f"""v_and_b32 v{T}, 15, v207
    v_lshrrev_b32 v{T+1}, 4, v207
    s_and_b32 s3, s20, 3
    s_lshl_b32 s26, s3, 2
    s_mul_i32 s33, s57, 80
    s_add_u32 s26, s26, s33
    v_add_u32 v{T+2}, s26, v{T+1}
    v_mul_u32_u24 v{T+2}, {pitch}, v{T+2}
    v_lshl_add_u32 v{T+2}, v{T}, 4, v{T+2}
    s_lshl_b32 s26, s22, 1
    v_add_u32 v{T+2}, s26, v{T+2}
    v_cmp_gt_u32 vcc, {NC}, v{T}
    v_mov_b32 v{T+3}, 0x40000000
    s_cmp_eq_u32 s56, 0
    s_cselect_b32 s60, s12, s16
    s_cselect_b32 s61, s13, s17
    s_cselect_b32 s62, s14, s18
    s_mov_b32 s63, 0x20000
    v_cndmask_b32 v{T+2}, v{T+3}, v{T+2}, vcc""")
    for i in range(5): A(f"s_mov_b32 s26, {16*i*pitch}\nbuffer_load_dwordx4 {vr(WL+4*i,4)}, v{T+2}, s[60:63], s26 offen")
    A(f"""v_lshrrev_b32 v{T+2}, 1, v{T}
    v_and_b32 v{T}, 1, v{T}
    v_lshlrev_b32 v{T+2}, 7, v{T+2}
    v_lshl_add_u32 v{T+2}, v{T}, {4 if gu else 6}, v{T+2}
    v_lshrrev_b32 v{T}, 1, v{T+1}
    v_lshl_add_u32 v{T+2}, v{T}, 5, v{T+2}
    v_and_b32 v{T}, 1, v{T+1}
    v_lshl_add_u32 v{T+2}, v{T}, 3, v{T+2}
    s_lshl_b32 s26, s56, {6 if gu else 4}
    s_mul_i32 s3, s3, 768
    s_add_u32 s26, s26, s3
    s_add_u32 s26, s26, {CSB}
    v_add_u32 v{T+2}, s26, v{T+2}
    v_mov_b32 v{T+3}, {CSB+3072}
    v_cndmask_b32 v{VCR}, v{T+3}, v{T+2}, vcc
    s_mov_b32 s29, 0x3f803f80""")
    PL=A.L; A=A0
    NX=2 if gu else 1; NW_=3 if gu else 5
    def reads(F, st, ks):
        sl=st%NS; L=[]
        xs=[f"ds_read_b128 {vr(F+4*j,4)}, v{VXR+2*(st&1)+ks} offset:{((st>>1)%3)*4096+j*XW}" for j in range(NX)]
        for t in range(NW_):
            if t<NX: L.append(xs[t])
            for e in range(2):
                L.append(f"ds_read_b64_tr_b16 {vr(F+8+4*t+2*e,2)}, v{VWR} offset:{sl*WS+((4*ks+e)*NT+t)*128}")
        return L if 'noread' not in EXP else []
    def mf(F,z=False): return [f"v_mfma_f32_32x32x16_bf16 {vr(ACC+16*(NW_*j+t),16)}, {vr(F+8+4*t,4)}, {vr(F+4*j,4)}, {0 if z else vr(ACC+16*(NW_*j+t),16)}" for t in range(NW_) for j in range(NX)]
    def half(m, rd, extra):
        out=[]; per=(len(rd)+2)//3
        for i,x in enumerate(m):
            out.append(x)
            out+=rd[:per]; rd=rd[per:]
            if i>=2 and extra:
                n=(len(extra)+len(m)-1-i)//(len(m)-i); out+=extra[:n]; extra=extra[n:]
        return out+rd+extra
    SS=[int(x) for x in os.environ.get('SS','').split(',') if x]
    if 'skipdma' in EXP: dmax=lambda g: []; dmaw=lambda g: []
    if 'nomfma' in EXP: mf=lambda F,z=False: ["s_nop 0"]*(NX*NW_)
    log=['w0','w0','x0','x0','x1','x1','w1','w1']+['r']*NPF
    S0=5; SP=[]
    for st in range(20):
        need={f"w{st}",f"x{st&~1}",f"x{st|1}"}
        if st==S0: need.add('p')
        if st==19: need.add('q')
        if st==S0+5: need.add('n')
        if st==S0+7: need.add('s')
        last=max([i for i,x in enumerate(log) if x in need]+[-1])
        A(f"s_waitcnt vmcnt({min(63,len(log)-1-last)}) lgkmcnt(0)\ns_barrier")
        if st in SS: stamp(A,1+SS.index(st))
        dx=dmax(st+4) if st+4<20 else []; dw=dmaw(st+4) if st+4<20 else []
        ex=[]; ex2=[]
        if st==S0:
            B=Asm(); rowstat(B); ex=[l for l in B.L]
            for e in range(8):
                u=U+e
                for i in range(5):
                    r=WL+4*i+(e>>1); d=u if i==0 else T+(i&1)
                    ex.append(f"v_and_b32 v{d}, s32, v{r}" if e&1 else f"v_lshlrev_b32 v{d}, 16, v{r}")
                    if i: ex.append(f"v_add_f32 v{u}, v{u}, v{d}")
            ex.append("s_nop 1")
            ex+=[f"v_permlane32_swap_b32 v{U+i}, v{U+4+i}" for i in range(4)]+["s_nop 1"]
            ex+=[f"v_add_f32 v{U+i}, v{U+i}, v{U+4+i}" for i in range(4)]+["s_nop 1"]
            ex+=[f"v_permlane16_swap_b32 v{U+i}, v{U+2+i}" for i in range(2)]+["s_nop 1"]
            ex+=[f"v_add_f32 v{U+i}, v{U+i}, v{U+2+i}" for i in range(2)]
            ex.append(f"ds_write_b64 v{VCR}, {vr(U,2)}")
            n=(len(ex)+23)//24; SP=["\n".join(ex[i:i+n]) for i in range(0,len(ex),n)]
            srow=max(i for i,x in enumerate(SP) if 'buffer_store' in x)
        if S0<=st<S0+4:
            k=6*(st-S0); ex=SP[k:k+3]; ex2=SP[k+3:k+6]
        if st==S0+4:
            ex=[f"""v_lshl_add_u32 v{U}, s20, 6, v207
            v_cmp_gt_u32 vcc, 192, v{U}
            v_lshlrev_b32 v{U}, 2, v{U}
            v_add_u32 v{U+1}, {CSB}, v{U}
            ds_read_b32 v{U+2}, v{U+1}
            ds_read_b32 v{U+3}, v{U+1} offset:768
            ds_read_b32 v{U+4}, v{U+1} offset:1536
            ds_read_b32 v{U+5}, v{U+1} offset:2304
            v_mov_b32 v{U+1}, 0x40000000
            s_lshl_b32 s26, s58, 3
            s_add_u32 s26, s26, s57
            s_mul_i32 s33, s26, 768
            s_add_u32 s33, s33, {CSP_OFF}
            v_cndmask_b32 v{U}, v{U+1}, v{U}, vcc"""]
            ex2=[f"""v_add_f32 v{U+2}, v{U+2}, v{U+3}
            v_add_f32 v{U+4}, v{U+4}, v{U+5}
            v_add_f32 v{U+2}, v{U+2}, v{U+4}
            buffer_store_dword v{U+2}, v{U}, s[64:67], s33 offen sc1"""]
        if st==S0+5:
            B=Asm(); B(f"v_readfirstlane_b32 s82, v{PF}\ns_cmp_lg_u32 s82, 0\ns_cbranch_scc1 NG{P}_done"); nonce_get(B,P,U,-1); ex=["\n".join(B.L)]
        if st==2 and 'dotlb' in EXP:
            ex=[f"""s_mov_b32 s60, s48
            s_mov_b32 s61, s49
            s_mov_b32 s62, 0x1900000
            s_mov_b32 s63, 0x20000
            v_mul_u32_u24 v{PF+4}, 0x62000, v207
            s_cmp_eq_u32 s20, 1
            s_cselect_b32 s26, 0, 0x40000000
            buffer_load_dword v{PF+5}, v{PF+4}, s[60:63], s26 offen sc1"""]; log+=['r']
        if st==4:
            ex=[f"v_mov_b32 v{PF+1}, 0\nbuffer_load_dword v{PF}, v{PF+1}, s[68:71], 0 offen sc1"]; log+=['n']
        if st==S0+7:
            B=Asm(); flagset(B,P); ex=["\n".join(B.L)]; log+=['f']
        if st==15:
            B=Asm(); flagpoll(B,P); ex=["\n".join(B.L)]
        if st==16:
            ex=[f"""v_and_b32 v{U}, 31, v207
            v_add_u32 v{U}, s59, v{U}
            v_lshlrev_b32 v{U}, 3, v{U}
            s_mul_i32 s33, s58, {8*768}
            s_add_u32 s33, s33, {CSP_OFF}
            s_add_u32 s34, s33, {4*768}
            v_lshl_add_u32 v{U+1}, s20, 6, v207
            v_cmp_gt_u32 vcc, 192, v{U+1}
            v_lshlrev_b32 v{U+1}, 2, v{U+1}
            v_mov_b32 v{U+2}, 0x40000000
            v_add_u32 v{VCR}, {CSB}, v{U+1}
            v_mov_b32 v{U+3}, {CSB+3072}
            v_cndmask_b32 v{U+1}, v{U+2}, v{U+1}, vcc
            v_cndmask_b32 v{VCR}, v{U+3}, v{VCR}, vcc"""]
            for j in range(NX): ex.append(f"buffer_load_dwordx2 {vr(WL+4*j,2)}, v{U}, s[64:67], 0 offen offset:{256*j} sc1")
            for j in range(8): ex2.append(f"buffer_load_dword v{WL+8+j}, v{U+1}, s[64:67], s{33+(j>>2)} offen offset:{768*(j&3)} sc1")
            log+=['q']*(NX+8)
        if st==19:
            ex=[f"v_add_f32 v{WL+8+j}, v{WL+8+j}, v{WL+12+j}" for j in range(4)]+[f"v_add_f32 v{WL+8+j}, v{WL+8+j}, v{WL+10+j}" for j in range(2)]
            ex=["\n".join(ex+[f"v_add_f32 v{WL+8}, v{WL+8}, v{WL+9}",f"ds_write_b32 v{VCR}, v{WL+8}"])]
        if st==0:
            dx=dmax(2)+dmaw(2)+dmax(3)+dmaw(3); dw=dmax(4)+dmaw(4)
            log+=[f"{c}{k}" for k in (2,3,4) for c in "xxww"] if dx else []
        elif st==1:
            n=(len(PL)+3)//4; ex2=["\n".join(PL[i:i+n]) for i in range(0,len(PL),n)]
            log+=[f"x{st+4}"]*len(dx)+['p']*8+[f"w{st+4}"]*len(dw)
        elif st>=S0 and st in (S0+srow//6,S0+4): log+=[f"x{st+4}"]*len(dx)+['s']+[f"w{st+4}"]*len(dw)
        else: log+= [f"x{st+4}"]*len(dx)+[f"w{st+4}"]*len(dw)
        if st==0:
            for x in reads(FA,st,0)+dx: A(x)
        else:
            for x in half(mf(FB),reads(FA,st,0), ex+dx): A(x)
        A("s_waitcnt lgkmcnt(0)")
        for x in half(mf(FA,st==0),reads(FB,st,1), ex2+dw): A(x)
    A("s_waitcnt lgkmcnt(0)")
    for x in mf(FB): A(x)
    if not SS: stamp(A,1)
    A(f"""v_and_b32 v{T}, 31, v207
    v_lshrrev_b32 v{T+1}, 5, v207
    v_lshlrev_b32 v{T+2}, 4, v{T+1}
    s_mul_i32 s26, s56, {3*128 if gu else 0}
    s_add_u32 s26, s26, {CSB}
    v_add_u32 v{T+2}, s26, v{T+2}
    v_add_u32 v{T}, s59, v{T}
    s_waitcnt lgkmcnt(0)
    s_barrier
    """)
    if not gu: A(f"v_mul_f32 v{WL+1}, s23, v{WL+1}")
    C=FA
    def norm(t0,t1):
        for t in range(t0,t1):
            for g in range(4): A(f"ds_read_b128 {vr(C+16*(t-t0)+4*g,4)}, v{T+2} offset:{(t*32+8*g)*4}")
        n=(t1-t0)*4
        for t in range(t0,t1):
            for g in range(4):
                n-=1
                A(f"s_waitcnt lgkmcnt({n})")
                for j in range(NX):
                    for p in range(2):
                        a=ACC+16*(NW_*j+t)+4*g+2*p; c=C+16*(t-t0)+4*g+2*p
                        A(f"v_pk_fma_f32 {vr(a,2)}, {vr(c,2)}, {vr(WL+4*j,2)}, {vr(a,2)} op_sel_hi:[1,0,1]")
                    for p in range(2):
                        a=ACC+16*(NW_*j+t)+4*g+2*p
                        A(f"v_pk_mul_f32 {vr(a,2)}, {vr(a,2)}, {vr(WL+4*j,2)} op_sel:[0,1] op_sel_hi:[1,1]")
    if not gu: norm(0,3); norm(3,5)
    if gu:
        c0=-2*math.sqrt(2/math.pi)*math.log2(math.e); c1=c0*0.044715
        for t in range(3):
            for g in range(4): A(f"ds_read_b128 {vr(C+16*t+4*g,4)}, v{T+2} offset:{(t*32+8*g)*4}")
        A(f"""v_lshrrev_b32 v{T+3}, 4, v{T}
        v_mul_u32_u24 v{T+3}, {74*1024}, v{T+3}
        v_and_b32 v{T}, 15, v{T}
        v_lshl_add_u32 v{T}, v{T}, 4, v{T+3}
        v_lshl_add_u32 v{T}, v{T+1}, 8, v{T}
        s_lshl_b32 s26, s22, 5
        s_mul_i32 s3, s56, 1536
        s_add_u32 s26, s26, s3
        s_mov_b32 s33, {2*74*1024}
        v_add_u32 v{T}, s26, v{T}
        s_mov_b32 s34, {hx(c1)}
        v_rcp_f32 v{WL+2}, v{WL+1}
        v_rcp_f32 v{WL+6}, v{WL+5}
        v_mov_b32 v{T+10}, {hx(c0)}""")
        for t in range(3):
            A(f"s_waitcnt lgkmcnt({8-4*t})")
            for j in range(2):
                a=ACC+16*(3*j+t); E=(152,184)[j]; O=E+8
                for p in range(8): A(f"v_pk_fma_f32 {vr(a+2*p,2)}, {vr(C+16*t+2*p,2)}, {vr(WL+4*j,2)}, {vr(a+2*p,2)} op_sel_hi:[1,0,1]")
                for p in range(4): A(f"v_pk_mul_f32 {vr(a+2*p,2)}, {vr(a+2*p,2)}, {vr(WL+4*j,2)} op_sel:[0,1] op_sel_hi:[1,1]")
                for p in range(4): A(f"v_pk_mul_f32 {vr(E+2*p,2)}, {vr(a+2*p,2)}, {vr(a+2*p,2)}")
                for p in range(4): A(f"v_pk_fma_f32 {vr(E+2*p,2)}, {vr(E+2*p,2)}, s[34:35], {vr(T+10,2)} op_sel_hi:[1,0,0]")
                for p in range(4): A(f"v_pk_mul_f32 {vr(E+2*p,2)}, {vr(E+2*p,2)}, {vr(a+2*p,2)}")
                for i in range(8): A(f"v_exp_f32 v{E+i}, v{E+i}")
                for p in range(4): A(f"v_pk_mul_f32 {vr(a+2*p,2)}, {vr(a+2*p,2)}, {vr(a+8+2*p,2)}")
                for p in range(4): A(f"v_pk_fma_f32 {vr(E+2*p,2)}, {vr(E+2*p,2)}, {vr(WL+2+4*j,2)}, {vr(WL+2+4*j,2)} op_sel_hi:[1,0,0]")
                for i in range(8): A(f"v_rcp_f32 v{E+i}, v{E+i}")
                A("s_nop 0")
                for p in range(4): A(f"v_pk_mul_f32 {vr(a+2*p,2)}, {vr(a+2*p,2)}, {vr(E+2*p,2)}")
                for p in range(4): A(f"v_cvt_pk_bf16_f32 v{O+p}, v{a+2*p}, v{a+2*p+1}")
                if t==2 and j==1: k23.early_poll(A)
                A(f"buffer_store_dwordx4 {vr(O,4)}, v{T}, s[4:7], {'s33' if j else 0} offen offset:{512*t}{SM}")
    else:
        A(f"""v_and_b32 v{T}, 31, v207
        v_mul_u32_u24 v{T}, 48, v{T}
        s_mul_i32 s26, s20, 12288
        s_movk_i32 s33, 6144
        v_mad_u32_u24 v{T}, v{T+1}, s33, v{T}
        v_add_u32 v{T}, s26, v{T}
        v_lshl_add_u32 v{T+1}, v207, 4, s26
        s_mul_i32 s33, s27, {QKV_PLANE}
        s_mul_i32 s26, s59, 48
        s_add_u32 s33, s33, s26
        v_lshlrev_b32 v{T+3}, 4, v207
        v_add_u32 v{T+5}, {QKV_PLANE+512}, v{T+3}
        v_add_u32 v{T+4}, 1024, v{T+3}
        v_add_u32 v{T+6}, {QKV_PLANE-512}, v{T+3}
        v_cmp_gt_u32 vcc, 32, v207
        s_nop 1
        v_cndmask_b32 v{T+4}, v{T+6}, v{T+4}, vcc""")
        for hd in range(4):
            O=FA+12*hd
            for p in range(10): A(f"v_cvt_pk_bf16_f32 v{O+p}, v{ACC+20*hd+2*p}, v{ACC+20*hd+2*p+1}")
            A(f"v_mov_b32 v{O+10}, s29\nv_mov_b32 v{O+11}, s29")
            for p in range(3): A(f"ds_write_b128 v{T}, {vr(O+4*p,4)} offset:{hd*1536+16*p}")
        A("s_waitcnt lgkmcnt(0)")
        for i in range(12): A(f"ds_read_b128 {vr(4*i,4)}, v{T+1} offset:{1024*i}")
        for i in range(12):
            A(f"s_waitcnt lgkmcnt({11-i})\nbuffer_store_dwordx4 {vr(4*i,4)}, v{T+3+i%3}, s[4:7], s33 offen{SM}")
            if i%3==2: A(f"s_add_u32 s33, s33, {2*QKV_PLANE}")
    A("s_mov_b32 s44, 0")
    if gu: k23.early_kv(A)
    if not SS: stamp(A,2)
    A("s_branch PHB")
import struct
def hx(f): return "0x%08x"%struct.unpack('<I',struct.pack('<f',f))[0]
def gen(A):
    head(A,KNAME)
    A(f"""
    s_cmp_ge_u32 s2, 16
    s_cbranch_scc1 K1_nocpf
    s_getpc_b64 s[36:37]
    v_lshlrev_b32 v2, 6, v0
    v_min_u32 v3, {CPF_TAIL}, v2
    global_load_dword v{PF+2}, v2, s[36:37]
    v_add_u32 v3, 0x8000, v3
    global_load_dword v{PF+3}, v3, s[36:37]
    K1_nocpf:
    s_cmp_ge_u32 s2, 256
    s_cbranch_scc1 K1_exit
    """); stamp(A,0); A(f"""
    s_load_dwordx4 s[40:43], s[0:1], 0
    s_load_dwordx4 s[44:47], s[0:1], 32
    s_load_dwordx4 s[72:75], s[0:1], 64
    v_lshrrev_b32 v1, 6, v0
    v_and_b32 v207, 63, v0
    s_and_b32 s3, s2, 7
    v_readfirstlane_b32 s20, v1
    s_lshr_b32 s4, s2, 3
    s_and_b32 s5, s3, 1
    s_lshr_b32 s6, s3, 1
    s_and_b32 s7, s4, 3
    s_lshl_b32 s5, s5, 2
    s_add_u32 s5, s5, s7
    s_lshr_b32 s4, s4, 2
    s_lshl_b32 s21, s5, 8
    s_lshl_b32 s7, s20, 5
    s_add_u32 s21, s21, s7
    v_lshrrev_b32 v{T}, 3, v207
    v_add_u32 v{T}, s21, v{T}
    v_mul_u32_u24 v{T}, 1280, v{T}
    v_lshrrev_b32 v{T+1}, 4, v207
    v_xor_b32 v{T+1}, v{T+1}, v207
    v_and_b32 v{T+1}, 7, v{T+1}
    v_lshl_add_u32 v{VX}, v{T+1}, 4, v{T}
    v_xor_b32 v{VX+1}, 64, v{VX}
    v_add_u32 v{VX+1}, {8*1280}, v{VX+1}
    v_add_u32 v{VX+2}, {16*1280}, v{VX}
    v_add_u32 v{VX+3}, {16*1280}, v{VX+1}
    s_mov_b32 s50, s4
    s_mov_b32 s51, s6
    s_mov_b32 s57, s5
    s_lshl_b32 s7, s6, 3
    s_add_u32 s76, s7, s4
    s_mov_b32 s32, 0xffff0000
    s_waitcnt lgkmcnt(0)
    s_mov_b32 s48, s74
    s_mov_b32 s49, s75
    """)
    srd(A,8,40,2621440)
    A(f"""s_cmp_lt_u32 s50, 3
    s_cbranch_scc0 K1_gu
    s_mul_i32 s51, s51, 3
    s_add_u32 s51, s51, s50
    s_mul_i32 s22, s51, 160
    s_mov_b32 s58, s51
    s_mov_b32 s59, s21
    s_lshl_b32 s27, s51, 3
    s_cmp_lt_u32 s51, 4
    s_cselect_b32 s23, {hx(20**-0.5*math.log2(math.e))}, 1.0
    """)
    srd(A,12,42,640*3840); srd(A,16,42,640*3840-160,160); srd(A,4,48,96*QKV_PLANE)
    variant(A,5,False)
    A(f"""K1_gu:
    s_sub_u32 s50, s50, 3
    s_mul_i32 s52, s51, 5
    s_lshl_b32 s53, s51, 2
    s_add_u32 s53, s53, 2
    s_cmp_lt_u32 s51, 2
    s_cselect_b32 s52, s52, s53
    s_cselect_b32 s53, 5, 4
    s_cmp_ge_u32 s50, s53
    s_cbranch_scc1 K1_pack
    s_add_u32 s52, s52, s50
    s_mul_i32 s22, s52, 96
    s_add_u32 s58, s52, 12
    s_and_b32 s3, s20, 3
    s_lshl_b32 s59, s3, 6
    s_lshl_b32 s26, s57, 8
    s_add_u32 s59, s59, s26
    """)
    srd(A,12,44,640*3456); srd(A,16,46,640*3456); srd(A,4,48,HO_BYTES,HO_OFF)
    variant(A,6,True)
    pack(A)
    import k23; k23.gen(A)
    A("K1_exit:\ns_endpgm")

def pack(A):
    A("K1_pack:"); late(A)
    A(f"""
    s_load_dwordx2 s[42:43], s[0:1], 16
    s_load_dwordx2 s[44:45], s[0:1], 48
    s_sub_u32 s51, s51, 2
    s_lshl_b32 s51, s51, 3
    s_add_u32 s28, s51, s5
    s_mul_i32 s24, s20, 5120
    v_lshl_add_u32 v{T}, v207, 4, s24
    v_lshrrev_b32 v{T+1}, 4, v207
    v_lshlrev_b32 v{T+1}, 3, v{T+1}
    v_bfe_u32 v{T+2}, v207, 2, 2
    v_add_u32 v{T+1}, v{T+1}, v{T+2}
    v_mul_u32_u24 v{T+1}, 1280, v{T+1}
    v_and_b32 v{T+2}, 3, v207
    v_lshl_add_u32 v{T+1}, v{T+2}, 3, v{T+1}
    s_mul_i32 s3, s20, 160
    v_add_u32 v{T+1}, s3, v{T+1}
    s_mul_i32 s3, s20, {74*5120}
    v_lshl_add_u32 v{T+2}, v207, 4, s3
    v_add_u32 v{T+3}, 4096, v{T}
    v_add_u32 v{T+4}, 4096, v{T+2}
    s_waitcnt lgkmcnt(0)""")
    srd(A,4,48,WP_BYTES,WP_OFF)
    def issue(i):
        A(f"""s_add_u32 s27, s28, {16*i}
        s_cmp_ge_u32 s27, 54
        s_cselect_b32 s12, s42, s44
        s_cselect_b32 s13, s43, s45
        s_mov_b32 s14, {1728*1280}
        s_cselect_b32 s14, {640*1280}, s14
        s_mov_b32 s15, 0x20000
        s_cselect_b32 s3, 54, 0
        s_sub_u32 s3, s27, s3
        s_add_u32 m0, s24, {(i%3)*40960}
        s_mul_i32 s31, s3, {32*1280}""")
        for j in range(4): A(f"buffer_load_dwordx4 v{T}, s[12:15], s31 offen offset:{1024*j} lds")
        A(f"s_add_u32 m0, s24, {(i%3)*40960+4096}\ns_nop 0\nbuffer_load_dwordx4 v{T+3}, s[12:15], s31 offen lds")
    for i in range(3): issue(i)
    rowload(A); A("s_waitcnt vmcnt(0)"); rowstat(A); nonce_get(A,'P',U,-1); A("s_waitcnt vmcnt(0)\ns_barrier"); flagset(A,'P')
    A(f"v_add_u32 v{T+5}, {2*40960}, v{T+1}")
    for i in range(5):
        if i>=3: A(f"s_waitcnt vmcnt({15 if i==3 else 10})\ns_barrier")
        for t in range(5):
            for e in range(2): A(f"ds_read_b64_tr_b16 {vr(20*(i&1)+4*t+2*e,2)}, v{T+5 if i%3==2 else T+1} offset:{(i%3%2)*40960+e*4*1280+t*32}")
        A("s_waitcnt lgkmcnt(0)")
        if i<2: A("s_barrier"); issue(i+3)
        A(f"s_add_u32 s27, s28, {16*i}\ns_mul_i32 s30, s27, 5120\ns_cmp_lt_u32 s27, 74\ns_cselect_b32 s30, s30, 0x40000000")
        for t in range(4): A(f"buffer_store_dwordx4 {vr(20*(i&1)+4*t,4)}, v{T+2}, s[4:7], s30 offen offset:{1024*t}{SM}")
        A(f"buffer_store_dwordx4 {vr(20*(i&1)+16,4)}, v{T+4}, s[4:7], s30 offen{SM}")

def rowload(A):
    A(f"""s_mul_i32 s26, s73, 1280
    v_mul_u32_u24 v{XS+5}, 20, v207
    buffer_load_dwordx4 {vr(XS,4)}, v{XS+5}, s[8:11], s26 offen
    buffer_load_dword v{XS+4}, v{XS+5}, s[8:11], s26 offen offset:16""")
def rowstat(A):
    S=XS+6; Q=XS+7
    for i in range(5):
        A(f"v_lshlrev_b32 v{U}, 16, v{XS+i}\nv_and_b32 v{U+1}, s32, v{XS+i}")
        if i==0: A(f"v_add_f32 v{S}, v{U}, v{U+1}\nv_mul_f32 v{Q}, v{U}, v{U}\nv_fmac_f32 v{Q}, v{U+1}, v{U+1}")
        else: A(f"v_add_f32 v{S}, v{S}, v{U}\nv_fmac_f32 v{Q}, v{U}, v{U}\nv_add_f32 v{S}, v{S}, v{U+1}\nv_fmac_f32 v{Q}, v{U+1}, v{U+1}")
    for d in ["row_shr:1","row_shr:2","row_shr:4","row_shr:8","row_bcast:15 row_mask:0xa","row_bcast:31 row_mask:0xc"]:
        bc = " bound_ctrl:0" if "shr" in d else ""
        A(f"s_nop 1\nv_add_f32_dpp v{S}, v{S}, v{S} {d}{bc}\nv_add_f32_dpp v{Q}, v{Q}, v{Q} {d}{bc}")
    A(f"""v_mul_f32 v{S}, {hx(-1/640)}, v{S}
    v_mul_f32 v{Q}, {hx(1/640)}, v{Q}
    v_fma_f32 v{Q}, -v{S}, v{S}, v{Q}
    v_max_f32 v{Q}, 0, v{Q}
    v_add_f32 v{Q}, {hx(1e-5)}, v{Q}
    v_rsq_f32 v{Q}, v{Q}
    v_cmp_eq_u32 vcc, 63, v207
    v_mov_b32 v{U}, 0x40000000
    s_lshl_b32 s26, s73, 3
    v_cndmask_b32 v{U}, v{U}, 0, vcc
    buffer_store_dwordx2 {vr(S,2)}, v{U}, s[64:67], s26 offen sc1""")
def flagset(A,P): flag_put(A,U,207,72,FL_OFF)
def flagpoll(A,P):
    A(f"""s_cmp_lg_u32 s20, 0
    s_cbranch_scc1 FP{P}_done
    v_and_b32 v{U}, 7, v207
    s_and_b32 s26, s72, 31
    v_lshl_add_u32 v{U}, v{U}, 5, s26
    s_and_b32 s26, s72, 0xe0
    v_add_u32 v{U+1}, s26, v207
    v_cmp_gt_u32 vcc, 32, v207
    s_nop 1
    v_cndmask_b32 v{U}, v{U}, v{U+1}, vcc
    """)
    flag_wait(A,P,U,FL_OFF)

def late(A):
    A(f"""
    v_and_b32 v{T}, 31, v207
    v_lshrrev_b32 v{T+1}, 5, v207
    v_bfe_u32 v{T+2}, v207, 1, 3
    v_xor_b32 v{T+1}, v{T+1}, v{T+2}
    v_lshlrev_b32 v{T}, 7, v{T}
    v_lshl_add_u32 v{T}, v{T+1}, 4, v{T}
    s_mul_i32 s26, s20, {XW}
    v_add_u32 v{VXR}, s26, v{T}
    v_xor_b32 v{VXR+1}, 32, v{VXR}
    v_xor_b32 v{VXR+2}, 64, v{VXR}
    v_xor_b32 v{VXR+3}, 96, v{VXR}
""")
    srd(A,68,72,256); srd(A,64,48,CSP_OFF+30*8*768,ST_OFF)
    A("s_lshl_b32 s72, s57, 5\ns_add_u32 s72, s72, s76\ns_lshl_b32 s73, s72, 3\ns_add_u32 s73, s73, s20")
```

```python
from common import *
import math, k23
SM=' sc1'
CPF_TAIL=4900
NS=5; XW=3*4096; WB=8*XW; WS=12416; CSB=WB+NS*WS; K1_LDS=163840
ACC=0; FA=96; FB=124; CSR=152; VSUM=158; VSQ=159; VCS=160
VX=184; VW=165; VXR=188; VWR=168; VCR=169; T=170; U=192; PF=200; VS2=163; VQ2=164
XS=152; WL=208; END=228
K1_VG=252
def variant(A, NT, gu):
    P='G' if gu else 'Q'
    pitch=3456 if gu else 3840
    RD=NT*1024+128
    A(f"""
    s_mul_i32 s24, s20, {XW}
    s_mul_i32 s25, s20, {NT*128}
    s_add_u32 s25, s25, {WB}
    v_lshrrev_b32 v{T}, 3, v207
    v_bfe_u32 v{T+1}, v207, 1, 2
    v_and_b32 v{T+2}, 1, v207
    s_lshl_b32 s26, s20, 2
    v_add_u32 v{T+1}, s26, v{T+1}
    v_mul_u32_u24 v{T+1}, {pitch}, v{T+1}
    v_lshlrev_b32 v{T}, 5, v{T}
    v_lshl_add_u32 v{T}, v{T+2}, 4, v{T}
    s_lshl_b32 s26, s22, 1
    v_add3_u32 v{VW}, v{T}, v{T+1}, s26
    """)
    ehi = 0xffff if gu else 0xff
    def dmax(g):
        n=g>>1; j0=2*(g&1)
        return [f"s_add_u32 m0, s24, {(n%3)*4096+(j0+j)*1024}\ns_movk_i32 s30, {n*128}\nbuffer_load_dwordx4 v{VX+j0+j}, s[8:11], s30 offen lds" for j in range(2)]
    def dmaw(st):
        sl=st%NS
        return [f"s_add_u32 m0, s25, {sl*WS+R*RD}\ns_mov_b32 s31, {st*32*pitch}\ns_mov_b32 exec_hi, {ehi}\nbuffer_load_dwordx4 v{VW}, s[{12+4*R}:{15+4*R}], s31 offen lds\ns_mov_b32 exec_hi, -1" for R in range(2)]
    for d in dmaw(0)+dmax(0)+dmax(1): A(d)
    A('s_barrier')
    for d in dmaw(1): A(d)
    NPF=0
    if 'dopf' in EXP:
        nl=2 if gu else 3; NPF=3 if gu else 2
        A(f"""v_lshl_add_u32 v{T}, s20, 6, v207
        s_mov_b32 s26, {(2**32+nl-1)//nl}
        v_mul_hi_u32 v{T+1}, v{T}, s26
        s_and_b32 s3, s57, 3
        s_mul_i32 s3, s3, 160
        v_mul_u32_u24 v{T+2}, {nl}, v{T+1}
        v_sub_u32 v{T+2}, v{T}, v{T+2}
        v_add_u32 v{T+1}, s3, v{T+1}
        v_mul_u32_u24 v{T+1}, {pitch}, v{T+1}
        v_lshl_add_u32 v{T+1}, v{T+2}, 7, v{T+1}
        s_lshl_b32 s26, s22, 1
        v_cmp_gt_u32 vcc, {160*nl}, v{T}
        v_mov_b32 v{T+3}, 0x40000000
        v_add_u32 v{T+1}, s26, v{T+1}
        s_mov_b32 s26, {(2**32+9)//10}
        v_cndmask_b32 v{T+1}, v{T+3}, v{T+1}, vcc
        buffer_load_dword v{PF+4}, v{T+1}, s[12:15], 0 offen
        {f'buffer_load_dword v{PF+5}, v{T+1}, s[16:19], 0 offen' if gu else ''}
        v_mul_hi_u32 v{T+1}, v{T}, s26
        s_and_b32 s3, s76, 7
        s_lshl_b32 s3, s3, 5
        s_lshl_b32 s26, s57, 8
        s_add_u32 s3, s3, s26
        v_mul_u32_u24 v{T+2}, 10, v{T+1}
        v_sub_u32 v{T+2}, v{T}, v{T+2}
        v_add_u32 v{T+1}, s3, v{T+1}
        v_mul_u32_u24 v{T+1}, 1280, v{T+1}
        v_cmp_gt_u32 vcc, 320, v{T}
        v_lshl_add_u32 v{T+1}, v{T+2}, 7, v{T+1}
        s_nop 0
        v_cndmask_b32 v{T+1}, v{T+3}, v{T+1}, vcc
        buffer_load_dword v{PF+6}, v{T+1}, s[8:11], 0 offen""")
    if 'prio' in EXP: A(f's_cmp_lt_u32 s20, 4\ns_cbranch_scc1 L{P}_np\ns_setprio 1\nL{P}_np:')
    late(A)
    if gu: A(f"""s_and_b32 s3, s20, 3
    s_lshl_b32 s3, s3, 1
    s_sub_i32 s3, s3, s20
    s_mul_i32 s3, s3, {XW}
    v_add_u32 v{VXR}, s3, v{VXR}
    v_add_u32 v{VXR+1}, s3, v{VXR+1}
    v_add_u32 v{VXR+2}, s3, v{VXR+2}
    v_add_u32 v{VXR+3}, s3, v{VXR+3}
""")
    A(f"""
    v_lshrrev_b32 v{T}, 5, v207
    v_bfe_u32 v{T+1}, v207, 4, 1
    v_and_b32 v{T+2}, 1, v207
    v_bfe_u32 v{T+3}, v207, 2, 2
    v_bfe_u32 v{T+4}, v207, 1, 1
    v_mul_u32_u24 v{T+5}, {RD}, v{T+1 if gu else T+2}
    v_lshl_add_u32 v{T+5}, v{T+2 if gu else T+1}, 4, v{T+5}
    v_lshl_add_u32 v{T+5}, v{T+3}, 5, v{T+5}
    v_lshl_add_u32 v{T+5}, v{T+4}, 3, v{T+5}
    v_mul_u32_u24 v{T+6}, {2*NT*128}, v{T}
    v_add_u32 v{VWR}, {WB}, v{T+5}
    v_add_u32 v{VWR}, v{T+6}, v{VWR}
    s_lshr_b32 s56, s20, 2
    s_mul_i32 s26, s56, {3*128 if gu else 0}
    v_add_u32 v{VWR}, s26, v{VWR}
""")
    A0=A; A=Asm()
    nonce_put(A,T)
    rowload(A)
    NC=2*NT
    A(f"""v_and_b32 v{T}, 15, v207
    v_lshrrev_b32 v{T+1}, 4, v207
    s_and_b32 s3, s20, 3
    s_lshl_b32 s26, s3, 2
    s_mul_i32 s33, s57, 80
    s_add_u32 s26, s26, s33
    v_add_u32 v{T+2}, s26, v{T+1}
    v_mul_u32_u24 v{T+2}, {pitch}, v{T+2}
    v_lshl_add_u32 v{T+2}, v{T}, 4, v{T+2}
    s_lshl_b32 s26, s22, 1
    v_add_u32 v{T+2}, s26, v{T+2}
    v_cmp_gt_u32 vcc, {NC}, v{T}
    v_mov_b32 v{T+3}, 0x40000000
    s_cmp_eq_u32 s56, 0
    s_cselect_b32 s60, s12, s16
    s_cselect_b32 s61, s13, s17
    s_cselect_b32 s62, s14, s18
    s_mov_b32 s63, 0x20000
    v_cndmask_b32 v{T+2}, v{T+3}, v{T+2}, vcc""")
    for i in range(5): A(f"s_mov_b32 s26, {16*i*pitch}\nbuffer_load_dwordx4 {vr(WL+4*i,4)}, v{T+2}, s[60:63], s26 offen")
    A(f"""v_lshrrev_b32 v{T+2}, 1, v{T}
    v_and_b32 v{T}, 1, v{T}
    v_lshlrev_b32 v{T+2}, 7, v{T+2}
    v_lshl_add_u32 v{T+2}, v{T}, {4 if gu else 6}, v{T+2}
    v_lshrrev_b32 v{T}, 1, v{T+1}
    v_lshl_add_u32 v{T+2}, v{T}, 5, v{T+2}
    v_and_b32 v{T}, 1, v{T+1}
    v_lshl_add_u32 v{T+2}, v{T}, 3, v{T+2}
    s_lshl_b32 s26, s56, {6 if gu else 4}
    s_mul_i32 s3, s3, 768
    s_add_u32 s26, s26, s3
    s_add_u32 s26, s26, {CSB}
    v_add_u32 v{T+2}, s26, v{T+2}
    v_mov_b32 v{T+3}, {CSB+3072}
    v_cndmask_b32 v{VCR}, v{T+3}, v{T+2}, vcc
    s_mov_b32 s29, 0x3f803f80""")
    PL=A.L; A=A0
    NX=2 if gu else 1; NW_=3 if gu else 5
    def reads(F, st, ks):
        sl=st%NS; L=[]
        xs=[f"ds_read_b128 {vr(F+4*j,4)}, v{VXR+2*(st&1)+ks} offset:{((st>>1)%3)*4096+j*XW}" for j in range(NX)]
        for t in range(NW_):
            if t<NX: L.append(xs[t])
            for e in range(2):
                L.append(f"ds_read_b64_tr_b16 {vr(F+8+4*t+2*e,2)}, v{VWR} offset:{sl*WS+((4*ks+e)*NT+t)*128}")
        return L if 'noread' not in EXP else []
    def mf(F,z=False): return [f"v_mfma_f32_32x32x16_bf16 {vr(ACC+16*(NW_*j+t),16)}, {vr(F+8+4*t,4)}, {vr(F+4*j,4)}, {0 if z else vr(ACC+16*(NW_*j+t),16)}" for t in range(NW_) for j in range(NX)]
    def half(m, rd, extra):
        out=[]; per=(len(rd)+2)//3
        for i,x in enumerate(m):
            out.append(x)
            out+=rd[:per]; rd=rd[per:]
            if i>=2 and extra:
                n=(len(extra)+len(m)-1-i)//(len(m)-i); out+=extra[:n]; extra=extra[n:]
        return out+rd+extra
    SS=[int(x) for x in os.environ.get('SS','').split(',') if x]
    if 'skipdma' in EXP: dmax=lambda g: []; dmaw=lambda g: []
    if 'nomfma' in EXP: mf=lambda F,z=False: ["s_nop 0"]*(NX*NW_)
    log=['w0','w0','x0','x0','x1','x1','w1','w1']+['r']*NPF
    S0=5; SP=[]
    for st in range(20):
        need={f"w{st}",f"x{st&~1}",f"x{st|1}"}
        if st==S0: need.add('p')
        if st==19: need.add('q')
        if st==S0+5: need.add('n')
        if st==S0+7: need.add('s')
        last=max([i for i,x in enumerate(log) if x in need]+[-1])
        A(f"s_waitcnt vmcnt({min(63,len(log)-1-last)}) lgkmcnt(0)\ns_barrier")
        if st in SS: stamp(A,1+SS.index(st))
        dx=dmax(st+4) if st+4<20 else []; dw=dmaw(st+4) if st+4<20 else []
        ex=[]; ex2=[]
        if st==S0:
            B=Asm(); rowstat(B); ex=[l for l in B.L]
            for e in range(8):
                u=U+e
                for i in range(5):
                    r=WL+4*i+(e>>1); d=u if i==0 else T+(i&1)
                    ex.append(f"v_and_b32 v{d}, s32, v{r}" if e&1 else f"v_lshlrev_b32 v{d}, 16, v{r}")
                    if i: ex.append(f"v_add_f32 v{u}, v{u}, v{d}")
            ex.append("s_nop 1")
            ex+=[f"v_permlane32_swap_b32 v{U+i}, v{U+4+i}" for i in range(4)]+["s_nop 1"]
            ex+=[f"v_add_f32 v{U+i}, v{U+i}, v{U+4+i}" for i in range(4)]+["s_nop 1"]
            ex+=[f"v_permlane16_swap_b32 v{U+i}, v{U+2+i}" for i in range(2)]+["s_nop 1"]
            ex+=[f"v_add_f32 v{U+i}, v{U+i}, v{U+2+i}" for i in range(2)]
            ex.append(f"ds_write_b64 v{VCR}, {vr(U,2)}")
            n=(len(ex)+23)//24; SP=["\n".join(ex[i:i+n]) for i in range(0,len(ex),n)]
            srow=max(i for i,x in enumerate(SP) if 'buffer_store' in x)
        if S0<=st<S0+4:
            k=6*(st-S0); ex=SP[k:k+3]; ex2=SP[k+3:k+6]
        if st==S0+4:
            ex=[f"""v_lshl_add_u32 v{U}, s20, 6, v207
            v_cmp_gt_u32 vcc, 192, v{U}
            v_lshlrev_b32 v{U}, 2, v{U}
            v_add_u32 v{U+1}, {CSB}, v{U}
            ds_read_b32 v{U+2}, v{U+1}
            ds_read_b32 v{U+3}, v{U+1} offset:768
            ds_read_b32 v{U+4}, v{U+1} offset:1536
            ds_read_b32 v{U+5}, v{U+1} offset:2304
            v_mov_b32 v{U+1}, 0x40000000
            s_lshl_b32 s26, s58, 3
            s_add_u32 s26, s26, s57
            s_mul_i32 s33, s26, 768
            s_add_u32 s33, s33, {CSP_OFF}
            v_cndmask_b32 v{U}, v{U+1}, v{U}, vcc"""]
            ex2=[f"""v_add_f32 v{U+2}, v{U+2}, v{U+3}
            v_add_f32 v{U+4}, v{U+4}, v{U+5}
            v_add_f32 v{U+2}, v{U+2}, v{U+4}
            buffer_store_dword v{U+2}, v{U}, s[64:67], s33 offen sc1"""]
        if st==S0+5:
            B=Asm(); B(f"v_readfirstlane_b32 s82, v{PF}\ns_cmp_lg_u32 s82, 0\ns_cbranch_scc1 NG{P}_done"); nonce_get(B,P,U,-1); ex=["\n".join(B.L)]
        if st==2 and 'dotlb' in EXP:
            ex=[f"""s_mov_b32 s60, s48
            s_mov_b32 s61, s49
            s_mov_b32 s62, 0x1900000
            s_mov_b32 s63, 0x20000
            v_mul_u32_u24 v{PF+4}, 0x62000, v207
            s_cmp_eq_u32 s20, 1
            s_cselect_b32 s26, 0, 0x40000000
            buffer_load_dword v{PF+5}, v{PF+4}, s[60:63], s26 offen sc1"""]; log+=['r']
        if st==4:
            ex=[f"v_mov_b32 v{PF+1}, 0\nbuffer_load_dword v{PF}, v{PF+1}, s[68:71], 0 offen sc1"]; log+=['n']
        if st==S0+7:
            B=Asm(); flagset(B,P); ex=["\n".join(B.L)]; log+=['f']
        if st==15:
            B=Asm(); flagpoll(B,P); ex=["\n".join(B.L)]
        if st==16:
            ex=[f"""v_and_b32 v{U}, 31, v207
            v_add_u32 v{U}, s59, v{U}
            v_lshlrev_b32 v{U}, 3, v{U}
            s_mul_i32 s33, s58, {8*768}
            s_add_u32 s33, s33, {CSP_OFF}
            s_add_u32 s34, s33, {4*768}
            v_lshl_add_u32 v{U+1}, s20, 6, v207
            v_cmp_gt_u32 vcc, 192, v{U+1}
            v_lshlrev_b32 v{U+1}, 2, v{U+1}
            v_mov_b32 v{U+2}, 0x40000000
            v_add_u32 v{VCR}, {CSB}, v{U+1}
            v_mov_b32 v{U+3}, {CSB+3072}
            v_cndmask_b32 v{U+1}, v{U+2}, v{U+1}, vcc
            v_cndmask_b32 v{VCR}, v{U+3}, v{VCR}, vcc"""]
            for j in range(NX): ex.append(f"buffer_load_dwordx2 {vr(WL+4*j,2)}, v{U}, s[64:67], 0 offen offset:{256*j} sc1")
            for j in range(8): ex2.append(f"buffer_load_dword v{WL+8+j}, v{U+1}, s[64:67], s{33+(j>>2)} offen offset:{768*(j&3)} sc1")
            log+=['q']*(NX+8)
        if st==17 and 'docp2' in EXP:
            ex=[f"""s_getpc_b64 s[36:37]
            CP2{P}:
            s_add_u32 s36, s36, PHB-CP2{P}
            s_addc_u32 s37, s37, 0
            v_lshl_add_u32 v{PF+4}, s20, 6, v207
            v_lshlrev_b32 v{PF+4}, 6, v{PF+4}
            v_min_u32 v{PF+4}, K1_exit-PHB-64, v{PF+4}
            global_load_dword v{PF+5}, v{PF+4}, s[36:37]"""]; log+=['r']
        if st==19:
            ex=[f"v_add_f32 v{WL+8+j}, v{WL+8+j}, v{WL+12+j}" for j in range(4)]+[f"v_add_f32 v{WL+8+j}, v{WL+8+j}, v{WL+10+j}" for j in range(2)]
            ex=["\n".join(ex+[f"v_add_f32 v{WL+8}, v{WL+8}, v{WL+9}",f"ds_write_b32 v{VCR}, v{WL+8}"])]
        if st==0:
            dx=dmax(2)+dmaw(2)+dmax(3)+dmaw(3); dw=dmax(4)+dmaw(4)
            log+=[f"{c}{k}" for k in (2,3,4) for c in "xxww"] if dx else []
        elif st==1:
            n=(len(PL)+3)//4; ex2=["\n".join(PL[i:i+n]) for i in range(0,len(PL),n)]
            log+=[f"x{st+4}"]*len(dx)+['p']*8+[f"w{st+4}"]*len(dw)
        elif st>=S0 and st in (S0+srow//6,S0+4): log+=[f"x{st+4}"]*len(dx)+['s']+[f"w{st+4}"]*len(dw)
        else: log+= [f"x{st+4}"]*len(dx)+[f"w{st+4}"]*len(dw)
        if st==0:
            for x in reads(FA,st,0)+dx: A(x)
        else:
            for x in half(mf(FB),reads(FA,st,0), ex+dx): A(x)
        A("s_waitcnt lgkmcnt(0)")
        for x in half(mf(FA,st==0),reads(FB,st,1), ex2+dw): A(x)
    A("s_waitcnt lgkmcnt(0)")
    for x in mf(FB): A(x)
    if not SS: stamp(A,1)
    A(f"""v_and_b32 v{T}, 31, v207
    v_lshrrev_b32 v{T+1}, 5, v207
    v_lshlrev_b32 v{T+2}, 4, v{T+1}
    s_mul_i32 s26, s56, {3*128 if gu else 0}
    s_add_u32 s26, s26, {CSB}
    v_add_u32 v{T+2}, s26, v{T+2}
    v_add_u32 v{T}, s59, v{T}
    s_waitcnt lgkmcnt(0)
    s_barrier
    """)
    if not gu: A(f"v_mul_f32 v{WL+1}, s23, v{WL+1}")
    C=FA
    def norm(t0,t1):
        for t in range(t0,t1):
            for g in range(4): A(f"ds_read_b128 {vr(C+16*(t-t0)+4*g,4)}, v{T+2} offset:{(t*32+8*g)*4}")
        n=(t1-t0)*4
        for t in range(t0,t1):
            for g in range(4):
                n-=1
                A(f"s_waitcnt lgkmcnt({n})")
                for j in range(NX):
                    for p in range(2):
                        a=ACC+16*(NW_*j+t)+4*g+2*p; c=C+16*(t-t0)+4*g+2*p
                        A(f"v_pk_fma_f32 {vr(a,2)}, {vr(c,2)}, {vr(WL+4*j,2)}, {vr(a,2)} op_sel_hi:[1,0,1]")
                    for p in range(2):
                        a=ACC+16*(NW_*j+t)+4*g+2*p
                        A(f"v_pk_mul_f32 {vr(a,2)}, {vr(a,2)}, {vr(WL+4*j,2)} op_sel:[0,1] op_sel_hi:[1,1]")
    if not gu: norm(0,3); norm(3,5)
    if gu:
        c0=-2*math.sqrt(2/math.pi)*math.log2(math.e); c1=c0*0.044715
        for t in range(3):
            for g in range(4): A(f"ds_read_b128 {vr(C+16*t+4*g,4)}, v{T+2} offset:{(t*32+8*g)*4}")
        A(f"""v_lshrrev_b32 v{T+3}, 4, v{T}
        v_mul_u32_u24 v{T+3}, {74*1024}, v{T+3}
        v_and_b32 v{T}, 15, v{T}
        v_lshl_add_u32 v{T}, v{T}, 4, v{T+3}
        v_lshl_add_u32 v{T}, v{T+1}, 8, v{T}
        s_lshl_b32 s26, s22, 5
        s_mul_i32 s3, s56, 1536
        s_add_u32 s26, s26, s3
        s_mov_b32 s33, {2*74*1024}
        v_add_u32 v{T}, s26, v{T}
        s_mov_b32 s34, {hx(c1)}
        v_rcp_f32 v{WL+2}, v{WL+1}
        v_rcp_f32 v{WL+6}, v{WL+5}
        v_mov_b32 v{T+10}, {hx(c0)}""")
        for t in range(3):
            A(f"s_waitcnt lgkmcnt({8-4*t})")
            for j in range(2):
                a=ACC+16*(3*j+t); E=(152,184)[j]; O=E+8
                for p in range(8): A(f"v_pk_fma_f32 {vr(a+2*p,2)}, {vr(C+16*t+2*p,2)}, {vr(WL+4*j,2)}, {vr(a+2*p,2)} op_sel_hi:[1,0,1]")
                for p in range(4): A(f"v_pk_mul_f32 {vr(a+2*p,2)}, {vr(a+2*p,2)}, {vr(WL+4*j,2)} op_sel:[0,1] op_sel_hi:[1,1]")
                for p in range(4): A(f"v_pk_mul_f32 {vr(E+2*p,2)}, {vr(a+2*p,2)}, {vr(a+2*p,2)}")
                for p in range(4): A(f"v_pk_fma_f32 {vr(E+2*p,2)}, {vr(E+2*p,2)}, s[34:35], {vr(T+10,2)} op_sel_hi:[1,0,0]")
                for p in range(4): A(f"v_pk_mul_f32 {vr(E+2*p,2)}, {vr(E+2*p,2)}, {vr(a+2*p,2)}")
                for i in range(8): A(f"v_exp_f32 v{E+i}, v{E+i}")
                for p in range(4): A(f"v_pk_mul_f32 {vr(a+2*p,2)}, {vr(a+2*p,2)}, {vr(a+8+2*p,2)}")
                for p in range(4): A(f"v_pk_fma_f32 {vr(E+2*p,2)}, {vr(E+2*p,2)}, {vr(WL+2+4*j,2)}, {vr(WL+2+4*j,2)} op_sel_hi:[1,0,0]")
                for i in range(8): A(f"v_rcp_f32 v{E+i}, v{E+i}")
                A("s_nop 0")
                for p in range(4): A(f"v_pk_mul_f32 {vr(a+2*p,2)}, {vr(a+2*p,2)}, {vr(E+2*p,2)}")
                for p in range(4): A(f"v_cvt_pk_bf16_f32 v{O+p}, v{a+2*p}, v{a+2*p+1}")
                if t==2 and j==1: k23.early_poll(A)
                A(f"buffer_store_dwordx4 {vr(O,4)}, v{T}, s[4:7], {'s33' if j else 0} offen offset:{512*t}{SM}")
    else:
        A(f"""v_and_b32 v{T}, 31, v207
        v_mul_u32_u24 v{T}, 48, v{T}
        s_mul_i32 s26, s20, 12288
        s_movk_i32 s33, 6144
        v_mad_u32_u24 v{T}, v{T+1}, s33, v{T}
        v_add_u32 v{T}, s26, v{T}
        v_lshl_add_u32 v{T+1}, v207, 4, s26
        s_mul_i32 s33, s27, {QKV_PLANE}
        s_mul_i32 s26, s59, 48
        s_add_u32 s33, s33, s26
        v_lshlrev_b32 v{T+3}, 4, v207
        v_add_u32 v{T+5}, {QKV_PLANE+512}, v{T+3}
        v_add_u32 v{T+4}, 1024, v{T+3}
        v_add_u32 v{T+6}, {QKV_PLANE-512}, v{T+3}
        v_cmp_gt_u32 vcc, 32, v207
        s_nop 1
        v_cndmask_b32 v{T+4}, v{T+6}, v{T+4}, vcc""")
        for hd in range(4):
            O=FA+12*hd
            for p in range(10): A(f"v_cvt_pk_bf16_f32 v{O+p}, v{ACC+20*hd+2*p}, v{ACC+20*hd+2*p+1}")
            A(f"v_mov_b32 v{O+10}, s29\nv_mov_b32 v{O+11}, s29")
            for p in range(3): A(f"ds_write_b128 v{T}, {vr(O+4*p,4)} offset:{hd*1536+16*p}")
        A("s_waitcnt lgkmcnt(0)")
        for i in range(12): A(f"ds_read_b128 {vr(4*i,4)}, v{T+1} offset:{1024*i}")
        for i in range(12):
            A(f"s_waitcnt lgkmcnt({11-i})\nbuffer_store_dwordx4 {vr(4*i,4)}, v{T+3+i%3}, s[4:7], s33 offen{SM}")
            if i%3==2: A(f"s_add_u32 s33, s33, {2*QKV_PLANE}")
    A("s_mov_b32 s44, 0")
    if gu: k23.early_kv(A)
    if not SS: stamp(A,2)
    A("s_branch PHB")
import struct
def hx(f): return "0x%08x"%struct.unpack('<I',struct.pack('<f',f))[0]
def gen(A):
    head(A,KNAME)
    A(f"""
    s_cmp_ge_u32 s2, 16
    s_cbranch_scc1 K1_nocpf
    s_getpc_b64 s[36:37]
    v_lshlrev_b32 v2, 6, v0
    v_min_u32 v3, {CPF_TAIL}, v2
    global_load_dword v{PF+2}, v2, s[36:37]
    v_add_u32 v3, 0x8000, v3
    global_load_dword v{PF+3}, v3, s[36:37]
    K1_nocpf:
    s_cmp_ge_u32 s2, 256
    s_cbranch_scc1 K1_exit
    """); stamp(A,0); A(f"""
    s_load_dwordx4 s[40:43], s[0:1], 0
    s_load_dwordx4 s[44:47], s[0:1], 32
    s_load_dwordx4 s[72:75], s[0:1], 64
    v_lshrrev_b32 v1, 6, v0
    v_and_b32 v207, 63, v0
    s_and_b32 s3, s2, 7
    v_readfirstlane_b32 s20, v1
    s_lshr_b32 s4, s2, 3
    s_and_b32 s5, s3, 1
    s_lshr_b32 s6, s3, 1
    s_and_b32 s7, s4, 3
    s_lshl_b32 s5, s5, 2
    s_add_u32 s5, s5, s7
    s_lshr_b32 s4, s4, 2
    s_lshl_b32 s21, s5, 8
    s_lshl_b32 s7, s20, 5
    s_add_u32 s21, s21, s7
    v_lshrrev_b32 v{T}, 3, v207
    v_add_u32 v{T}, s21, v{T}
    v_mul_u32_u24 v{T}, 1280, v{T}
    v_lshrrev_b32 v{T+1}, 4, v207
    v_xor_b32 v{T+1}, v{T+1}, v207
    v_and_b32 v{T+1}, 7, v{T+1}
    v_lshl_add_u32 v{VX}, v{T+1}, 4, v{T}
    v_xor_b32 v{VX+1}, 64, v{VX}
    v_add_u32 v{VX+1}, {8*1280}, v{VX+1}
    v_add_u32 v{VX+2}, {16*1280}, v{VX}
    v_add_u32 v{VX+3}, {16*1280}, v{VX+1}
    s_mov_b32 s50, s4
    s_mov_b32 s51, s6
    s_mov_b32 s57, s5
    s_lshl_b32 s7, s6, 3
    s_add_u32 s76, s7, s4
    s_mov_b32 s32, 0xffff0000
    s_waitcnt lgkmcnt(0)
    s_mov_b32 s48, s74
    s_mov_b32 s49, s75
    """)
    srd(A,8,40,2621440)
    A(f"""s_cmp_lt_u32 s50, 3
    s_cbranch_scc0 K1_gu
    s_mul_i32 s51, s51, 3
    s_add_u32 s51, s51, s50
    s_mul_i32 s22, s51, 160
    s_mov_b32 s58, s51
    s_mov_b32 s59, s21
    s_lshl_b32 s27, s51, 3
    s_cmp_lt_u32 s51, 4
    s_cselect_b32 s23, {hx(20**-0.5*math.log2(math.e))}, 1.0
    """)
    srd(A,12,42,640*3840); srd(A,16,42,640*3840-160,160); srd(A,4,48,96*QKV_PLANE)
    variant(A,5,False)
    A(f"""K1_gu:
    s_sub_u32 s50, s50, 3
    s_mul_i32 s52, s51, 5
    s_lshl_b32 s53, s51, 2
    s_add_u32 s53, s53, 2
    s_cmp_lt_u32 s51, 2
    s_cselect_b32 s52, s52, s53
    s_cselect_b32 s53, 5, 4
    s_cmp_ge_u32 s50, s53
    s_cbranch_scc1 K1_pack
    s_add_u32 s52, s52, s50
    s_mul_i32 s22, s52, 96
    s_add_u32 s58, s52, 12
    s_and_b32 s3, s20, 3
    s_lshl_b32 s59, s3, 6
    s_lshl_b32 s26, s57, 8
    s_add_u32 s59, s59, s26
    """)
    srd(A,12,44,640*3456); srd(A,16,46,640*3456); srd(A,4,48,HO_BYTES,HO_OFF)
    variant(A,6,True)
    pack(A)
    import k23; k23.gen(A)
    A("K1_exit:\ns_endpgm")

def pack(A):
    A("K1_pack:"); late(A)
    A(f"""
    s_load_dwordx2 s[42:43], s[0:1], 16
    s_load_dwordx2 s[44:45], s[0:1], 48
    s_sub_u32 s51, s51, 2
    s_lshl_b32 s51, s51, 3
    s_add_u32 s28, s51, s5
    s_mul_i32 s24, s20, 5120
    v_lshl_add_u32 v{T}, v207, 4, s24
    v_lshrrev_b32 v{T+1}, 4, v207
    v_lshlrev_b32 v{T+1}, 3, v{T+1}
    v_bfe_u32 v{T+2}, v207, 2, 2
    v_add_u32 v{T+1}, v{T+1}, v{T+2}
    v_mul_u32_u24 v{T+1}, 1280, v{T+1}
    v_and_b32 v{T+2}, 3, v207
    v_lshl_add_u32 v{T+1}, v{T+2}, 3, v{T+1}
    s_mul_i32 s3, s20, 160
    v_add_u32 v{T+1}, s3, v{T+1}
    s_mul_i32 s3, s20, {74*5120}
    v_lshl_add_u32 v{T+2}, v207, 4, s3
    v_add_u32 v{T+3}, 4096, v{T}
    v_add_u32 v{T+4}, 4096, v{T+2}
    s_waitcnt lgkmcnt(0)""")
    srd(A,4,48,WP_BYTES,WP_OFF)
    def issue(i):
        A(f"""s_add_u32 s27, s28, {16*i}
        s_cmp_ge_u32 s27, 54
        s_cselect_b32 s12, s42, s44
        s_cselect_b32 s13, s43, s45
        s_mov_b32 s14, {1728*1280}
        s_cselect_b32 s14, {640*1280}, s14
        s_mov_b32 s15, 0x20000
        s_cselect_b32 s3, 54, 0
        s_sub_u32 s3, s27, s3
        s_add_u32 m0, s24, {(i%3)*40960}
        s_mul_i32 s31, s3, {32*1280}""")
        for j in range(4): A(f"buffer_load_dwordx4 v{T}, s[12:15], s31 offen offset:{1024*j} lds")
        A(f"s_add_u32 m0, s24, {(i%3)*40960+4096}\ns_nop 0\nbuffer_load_dwordx4 v{T+3}, s[12:15], s31 offen lds")
    for i in range(3): issue(i)
    rowload(A); A("s_waitcnt vmcnt(0)"); rowstat(A); nonce_get(A,'P',U,-1); A("s_waitcnt vmcnt(0)\ns_barrier"); flagset(A,'P')
    A(f"v_add_u32 v{T+5}, {2*40960}, v{T+1}")
    for i in range(5):
        if i>=3: A(f"s_waitcnt vmcnt({15 if i==3 else 10})\ns_barrier")
        for t in range(5):
            for e in range(2): A(f"ds_read_b64_tr_b16 {vr(20*(i&1)+4*t+2*e,2)}, v{T+5 if i%3==2 else T+1} offset:{(i%3%2)*40960+e*4*1280+t*32}")
        A("s_waitcnt lgkmcnt(0)")
        if i<2: A("s_barrier"); issue(i+3)
        A(f"s_add_u32 s27, s28, {16*i}\ns_mul_i32 s30, s27, 5120\ns_cmp_lt_u32 s27, 74\ns_cselect_b32 s30, s30, 0x40000000")
        for t in range(4): A(f"buffer_store_dwordx4 {vr(20*(i&1)+4*t,4)}, v{T+2}, s[4:7], s30 offen offset:{1024*t}{SM}")
        A(f"buffer_store_dwordx4 {vr(20*(i&1)+16,4)}, v{T+4}, s[4:7], s30 offen{SM}")

def rowload(A):
    A(f"""s_mul_i32 s26, s73, 1280
    v_mul_u32_u24 v{XS+5}, 20, v207
    buffer_load_dwordx4 {vr(XS,4)}, v{XS+5}, s[8:11], s26 offen
    buffer_load_dword v{XS+4}, v{XS+5}, s[8:11], s26 offen offset:16""")
def rowstat(A):
    S=XS+6; Q=XS+7
    for i in range(5):
        A(f"v_lshlrev_b32 v{U}, 16, v{XS+i}\nv_and_b32 v{U+1}, s32, v{XS+i}")
        if i==0: A(f"v_add_f32 v{S}, v{U}, v{U+1}\nv_mul_f32 v{Q}, v{U}, v{U}\nv_fmac_f32 v{Q}, v{U+1}, v{U+1}")
        else: A(f"v_add_f32 v{S}, v{S}, v{U}\nv_fmac_f32 v{Q}, v{U}, v{U}\nv_add_f32 v{S}, v{S}, v{U+1}\nv_fmac_f32 v{Q}, v{U+1}, v{U+1}")
    for d in ["row_shr:1","row_shr:2","row_shr:4","row_shr:8","row_bcast:15 row_mask:0xa","row_bcast:31 row_mask:0xc"]:
        bc = " bound_ctrl:0" if "shr" in d else ""
        A(f"s_nop 1\nv_add_f32_dpp v{S}, v{S}, v{S} {d}{bc}\nv_add_f32_dpp v{Q}, v{Q}, v{Q} {d}{bc}")
    A(f"""v_mul_f32 v{S}, {hx(-1/640)}, v{S}
    v_mul_f32 v{Q}, {hx(1/640)}, v{Q}
    v_fma_f32 v{Q}, -v{S}, v{S}, v{Q}
    v_max_f32 v{Q}, 0, v{Q}
    v_add_f32 v{Q}, {hx(1e-5)}, v{Q}
    v_rsq_f32 v{Q}, v{Q}
    v_cmp_eq_u32 vcc, 63, v207
    v_mov_b32 v{U}, 0x40000000
    s_lshl_b32 s26, s73, 3
    v_cndmask_b32 v{U}, v{U}, 0, vcc
    buffer_store_dwordx2 {vr(S,2)}, v{U}, s[64:67], s26 offen sc1""")
def flagset(A,P): flag_put(A,U,207,72,FL_OFF)
def flagpoll(A,P):
    A(f"""s_cmp_lg_u32 s20, 0
    s_cbranch_scc1 FP{P}_done
    v_and_b32 v{U}, 7, v207
    s_and_b32 s26, s72, 31
    v_lshl_add_u32 v{U}, v{U}, 5, s26
    s_and_b32 s26, s72, 0xe0
    v_add_u32 v{U+1}, s26, v207
    v_cmp_gt_u32 vcc, 32, v207
    s_nop 1
    v_cndmask_b32 v{U}, v{U}, v{U+1}, vcc
    """)
    flag_wait(A,P,U,FL_OFF)

def late(A):
    A(f"""
    v_and_b32 v{T}, 31, v207
    v_lshrrev_b32 v{T+1}, 5, v207
    v_bfe_u32 v{T+2}, v207, 1, 3
    v_xor_b32 v{T+1}, v{T+1}, v{T+2}
    v_lshlrev_b32 v{T}, 7, v{T}
    v_lshl_add_u32 v{T}, v{T+1}, 4, v{T}
    s_mul_i32 s26, s20, {XW}
    v_add_u32 v{VXR}, s26, v{T}
    v_xor_b32 v{VXR+1}, 32, v{VXR}
    v_xor_b32 v{VXR+2}, 64, v{VXR}
    v_xor_b32 v{VXR+3}, 96, v{VXR}
""")
    srd(A,68,72,256); srd(A,64,48,CSP_OFF+30*8*768,ST_OFF)
    A("s_lshl_b32 s72, s57, 5\ns_add_u32 s72, s72, s76\ns_lshl_b32 s73, s72, 3\ns_add_u32 s73, s73, s20")
```
